```python
import torch

def _softmax(x, axis=-1):
    return torch.softmax(x, dim=axis)
def _gelu(x):
    return torch.nn.functional.gelu(x, approximate="tanh")
def _silu(x):
    return torch.nn.functional.silu(x)
def _sigmoid(x):
    return torch.sigmoid(x)
def _layernorm(x, axis=-1, eps=1e-5):
    m = x.mean(dim=axis, keepdim=True)
    v = x.var(dim=axis, keepdim=True, unbiased=False)
    return (x - m) / torch.sqrt(v + eps)
def _scatter_add(tgt, idx, src, axis=0):
    return tgt.clone().index_add_(axis, idx, src)
def _segment_sum(src, seg, n):
    out = torch.zeros((n,) + src.shape[1:], dtype=src.dtype)
    return out.index_add_(0, seg, src)
def _pad(x, pw):
    flat = tuple(v for pair in reversed(pw) for v in pair)
    return torch.nn.functional.pad(x, flat)

kernel_name = 'interleave_layers__sliding_local_dilated__glu_gated_glu__prompt'

def setup_inputs():

    _w = (lambda a: (lambda t: t.to(torch.bfloat16) if t.is_floating_point() else t)(torch.as_tensor(a)))
    def _A_setup():
        B, S, D = 1, 2048, 640
        return {
            "x": _w((lambda *s: torch.randn(*s, dtype=torch.bfloat16) * 0.05)(B, S, D)),
            "wqkv": _w((lambda *s: torch.randn(*s, dtype=torch.bfloat16) * 0.05)(D, 3 * D)),
            "wo": _w((lambda *s: torch.randn(*s, dtype=torch.bfloat16) * 0.05)(D, D)),
        }
    _A_in = _A_setup()

    def _B_setup():
        B, S, D, F = 1, 2048, 640, 1536
        return {
            "x": _w((lambda *s: torch.randn(*s, dtype=torch.bfloat16) * 0.05)(B, S, D)),
            "w_gate": _w((lambda *s: torch.randn(*s, dtype=torch.bfloat16) * 0.05)(D, F)),
            "w_up": _w((lambda *s: torch.randn(*s, dtype=torch.bfloat16) * 0.05)(D, F)),
            "w_down": _w((lambda *s: torch.randn(*s, dtype=torch.bfloat16) * 0.05)(F, D)),
        }
    _B_in = _B_setup()

    return {
        "A_x": _A_in["x"],
        "A_wqkv": _A_in["wqkv"],
        "A_wo": _A_in["wo"],
        "B_x": _B_in["x"],
        "B_w_gate": _B_in["w_gate"],
        "B_w_up": _B_in["w_up"],
        "B_w_down": _B_in["w_down"],
    }

def reference(A_x, A_wqkv, A_wo, B_x, B_w_gate, B_w_up, B_w_down):
    def _A_ref(x, wqkv, wo):
        B, S, D = x.shape
        H = 32; Dh = D // H
        W, dil = 8, 2
        qkv = (lambda x, *d: x.permute(*d))((x @ wqkv).reshape(B, S, 3, H, Dh), 2, 0, 3, 1, 4)
        q, k, v = qkv[0], qkv[1], qkv[2]
        scale = Dh ** -0.5
        pos = torch.arange(S)
        off = torch.arange(W) * dil
        idx = pos[:, None] - off[None, :]
        mask = idx >= 0
        idx_c = torch.where(mask, idx, 0).reshape(-1)
        kg = k[:, :, idx_c, :].reshape(B, H, S, W, Dh)
        vg = v[:, :, idx_c, :].reshape(B, H, S, W, Dh)
        logits = torch.einsum("bhsd,bhswd->bhsw", q, kg) * scale
        logits = torch.where(mask[None, None, :, :], logits, -1e9)
        attn = _softmax(logits, axis=-1)
        o = torch.einsum("bhsw,bhswd->bhsd", attn, vg)
        return (lambda x, *d: x.permute(*d))(o, 0, 2, 1, 3).reshape(B, S, D) @ wo

    def _B_ref(x, w_gate, w_up, w_down):
        g = torch.einsum("bsd,df->bsf", x, w_gate)
        u = torch.einsum("bsd,df->bsf", x, w_up)
        h = _sigmoid(g) * u
        return torch.einsum("bsf,fd->bsd", h, w_down)

    x = A_x
    x = x + _A_ref(_layernorm(x, axis=-1), A_wqkv, A_wo)
    x = x + _B_ref(_layernorm(x, axis=-1), B_w_gate, B_w_up, B_w_down)
    x = x + _A_ref(_layernorm(x, axis=-1), A_wqkv, A_wo)
    x = x + _B_ref(_layernorm(x, axis=-1), B_w_gate, B_w_up, B_w_down)
    return x
```

```python
NAME = "interleave_layers__sliding_local_dilated__glu_gated_glu__prompt"

def vr(b, n=1):
    return f"v{b}" if n == 1 else f"v[{b}:{b+n-1}]"
def ar(b, n=1):
    return f"a{b}" if n == 1 else f"a[{b}:{b+n-1}]"
def sr(b, n=1):
    return f"s{b}" if n == 1 else f"s[{b}:{b+n-1}]"

class Asm:
    def __init__(self):
        self.lines = []
        self.nlabel = 0
    def __call__(self, s):
        for l in s.split("\n"):
            l = l.strip()
            if l:
                self.lines.append(("" if l.endswith(":") else "    ") + l)
    def c(self, s):
        self.lines.append("    ; " + s)
    def label(self, base="L"):
        self.nlabel += 1
        return f"{base}_{self.nlabel}"
    def text(self):
        return "\n".join(self.lines) + "\n"

HEADER = """; Kernarg layout for this problem (80 bytes, ptrs only, base s[0:1]):
"""

def wrap(kernels):
    out = HEADER
    single = len(kernels) == 1 and kernels[0]["name"] == NAME + "_kernel"
    for k in kernels:
        g, b = k["grid"], k["block"]
        if single:
            out += f"; @launch grid=({g},1,1) block=({b},1,1) lds={k['lds']}\n"
        else:
            out += f"; @launch kernel={k['name']} grid=({g},1,1) block=({b},1,1) lds={k['lds']}\n"
    out += '.amdgcn_target "amdgcn-amd-amdhsa--gfx950"\n.text\n'
    seen = set()
    for k in kernels:
        if k["name"] in seen: continue
        seen.add(k["name"])
        out += f".globl {k['name']}\n.p2align 8\n.type {k['name']},@function\n{k['name']}:\n"
        out += k["body"]
    out += '.section .rodata,"a"\n'
    seen = set()
    for k in kernels:
        if k["name"] in seen: continue
        seen.add(k["name"])
        out += f""".p2align 6
.amdhsa_kernel {k['name']}
  .amdhsa_next_free_vgpr {k['vgpr']}
  .amdhsa_next_free_sgpr {k.get('sgpr', 102)}
  .amdhsa_accum_offset {k['accum']}
  .amdhsa_group_segment_fixed_size 0
  .amdhsa_kernarg_size 80
  .amdhsa_user_sgpr_count 2
  .amdhsa_user_sgpr_kernarg_segment_ptr 1
  .amdhsa_system_sgpr_workgroup_id_x 1
  .amdhsa_float_denorm_mode_32 3
.end_amdhsa_kernel
"""
    return out
```

```python
import re

REG_RE = re.compile(r"^(-|abs\()?([vas])(\d+|\[(\d+):(\d+)\])\)?$")

def regs_of(tok):
    tok = tok.strip()
    if tok in ("vcc", "exec", "m0", "scc"):
        return {tok}
    if tok in ("vcc_lo", "vcc_hi"): return {"vcc"}
    if tok in ("exec_lo", "exec_hi"): return {"exec"}
    m = REG_RE.match(tok)
    if not m:
        return set()
    f = m.group(2)
    if m.group(4) is not None:
        return {f"{f}{i}" for i in range(int(m.group(4)), int(m.group(5)) + 1)}
    return {f"{f}{m.group(3)}"}

TRANS = ("v_exp_f32", "v_log_f32", "v_rcp_f32", "v_rsq_f32", "v_sqrt_f32", "v_sin_f32", "v_cos_f32")

class I:
    __slots__ = ("text", "op", "reads", "writes", "kind", "passes", "srcc", "srcab", "wide_data", "states")

def split_ops(rest):
    out, depth, cur = [], 0, ""
    for ch in rest:
        if ch in "[(": depth += 1
        if ch in "])": depth -= 1
        if ch == "," and depth == 0:
            out.append(cur.strip()); cur = ""
        else:
            cur += ch
    if cur.strip(): out.append(cur.strip())
    if out:
        parts = out[-1].split()
        out[-1] = parts[0]
        mods = parts[1:]
    else:
        mods = []
    return out, mods

def parse(text):
    i = I(); i.text = text
    t = text.split(";")[0].strip()
    sp = t.split(None, 1)
    op = sp[0]; rest = sp[1] if len(sp) > 1 else ""
    ops, mods = split_ops(rest)
    i.op = op; i.reads = set(); i.writes = set(); i.passes = 0; i.srcc = set(); i.srcab = set(); i.wide_data = set(); i.states = 1
    R = lambda k: regs_of(ops[k]) if k < len(ops) else set()
    allr = lambda a: set().union(*[R(k) for k in range(a, len(ops))]) if len(ops) > a else set()
    if op.startswith("v_mfma"):
        i.kind = "mfma"; i.passes = 8 if "32x32x16" in op else 4
        i.writes = R(0); i.srcab = R(1) | R(2); i.srcc = R(3); i.reads = i.srcab | i.srcc
    elif op.startswith("v_permlane") and "swap" in op:
        i.kind = "perm"; i.writes = R(0) | R(1); i.reads = R(0) | R(1)
    elif op.startswith("v_cmp"):
        i.kind = "valu"; i.writes = R(0); i.reads = allr(1)
    elif op in ("v_readfirstlane_b32", "v_readlane_b32"):
        i.kind = "rdlane"; i.writes = R(0); i.reads = allr(1)
    elif op.startswith("v_"):
        i.kind = "trans" if op.replace("_e32", "").replace("_e64", "") in TRANS else "valu"
        i.writes = R(0); i.reads = allr(1)
        if op.startswith(("v_fmac", "v_dot2c", "v_writelane")): i.reads |= R(0)
        if op.startswith("v_dot2"): i.kind = "dot"; i.srcc = R(3) if len(ops) > 3 else R(0)
        if op.startswith(("v_add_co", "v_sub_co", "v_addc_co", "v_subb_co")): i.writes |= R(1); i.reads = allr(2)
        if "dpp" in op or any(m.startswith(("row_", "quad_perm", "wave_")) for m in mods):
            i.kind = "dpp"; i.reads |= R(0)
    elif op.startswith("ds_read") or op.startswith("ds_bpermute"):
        i.kind = "ds"; i.writes = R(0); i.reads = allr(1)
    elif op.startswith("ds_write") or op.startswith("ds_add"):
        i.kind = "ds"; i.reads = allr(0)
    elif op.startswith(("buffer_load", "global_load")):
        i.kind = "vm"
        if "lds" in mods or "_lds_" in op:
            i.reads = allr(0) | {"m0"}; i.kind = "vmlds"
        else:
            i.writes = R(0); i.reads = allr(1)
    elif op.startswith("buffer_store"):
        i.kind = "vm"; i.reads = allr(0)
        if op.endswith(("x3", "x4")): i.wide_data = R(0)
    elif op.startswith("global_store"):
        i.kind = "vm"; i.reads = allr(0)
        if op.endswith(("x3", "x4")): i.wide_data = R(1)
    elif op.startswith(("buffer_wbl2", "buffer_inv")):
        i.kind = "vm"
    elif op.startswith("s_load") or op in ("s_memtime", "s_memrealtime"):
        i.kind = "smem"; i.writes = R(0); i.reads = allr(1)
    elif op == "s_nop":
        i.kind = "nop"; i.states = int(ops[0], 0) + 1
    elif op.startswith("s_waitcnt") or op in ("s_barrier", "s_endpgm", "s_sleep", "s_setprio") or op.startswith(("s_cbranch", "s_branch")):
        i.kind = "ctl"
    elif op.startswith("s_cmp") or op.startswith("s_bitcmp"):
        i.kind = "salu"; i.reads = allr(0); i.writes = {"scc"}
    elif op.startswith("s_"):
        i.kind = "salu"; i.writes = R(0) | {"scc"}; i.reads = allr(1)
        if "saveexec" in op: i.writes |= {"exec"}; i.reads |= {"exec"}
        if op.startswith(("s_cselect", "s_addc", "s_subb")): i.reads |= {"scc"}
        if op.startswith(("s_mov", "s_cselect", "s_getreg", "s_getpc", "s_mul_i32", "s_mul_hi")): i.writes = R(0)
        if op.startswith(("s_addk", "s_mulk")): i.reads |= R(0)
    else:
        raise ValueError("unknown op " + text)
    if op.startswith("v_cndmask") and len(ops) == 3: i.reads |= {"vcc"}
    return i

VALUK = ("valu", "trans", "perm", "dpp", "rdlane", "dot")

class Em:
    def __init__(self):
        self.lines = []
        self.hist = []
        self.pos = 0
        self.vm_seq = 0; self.vm_done = 0
        self.ds_seq = 0; self.ds_done = 0
        self.pend_vm = {}; self.pend_ds = {}
        self.pend_sm = set()
        self.smem_out = False
        self.nlabel = 0
        self.stat = dict(nops=0, nopstates=0, waits=0, insts=0)
        self.barriers = 0
        self.log_nops = []
    def raw(self, s): self.lines.append(s)
    def c(self, s): self.lines.append("; " + s)
    def label(self, base="L"):
        self.nlabel += 1
        return f"{base}{self.nlabel}"
    def place(self, lab):
        self.lines.append(lab + ":")
    def text(self): return "\n".join(self.lines) + "\n"
    def _push(self, i):
        self.lines.append(i.text)
        self.hist.append((i, self.pos))
        self.pos += i.states
        if len(self.hist) > 40: self.hist.pop(0)
        self.stat["insts"] += 1
    def wait(self, vm=None, ds=None):
        parts = []
        if vm is not None and vm > self.vm_done:
            n = self.vm_seq - vm
            assert n <= 63, f"vmcnt {n} too large"
            parts.append(f"vmcnt({n})"); self.vm_done = vm
        if ds is not None and (ds > self.ds_done or self.smem_out):
            n = self.ds_seq - ds
            if self.smem_out: n = 0; ds = self.ds_seq
            if n > 15: n = 15; ds = self.ds_seq - 15
            parts.append(f"lgkmcnt({n})"); self.ds_done = ds
            if n == 0: self.smem_out = False; self.pend_sm = set()
        if parts:
            self._push(parse("s_waitcnt " + " ".join(parts))); self.stat["waits"] += 1
            self.pend_vm = {r: s for r, s in self.pend_vm.items() if s > self.vm_done}
            self.pend_ds = {r: s for r, s in self.pend_ds.items() if s > self.ds_done}
    def wait_all(self, vm=True, ds=True):
        self.wait(self.vm_seq if vm else None, self.ds_seq if ds else None)
    def force_wait(self, text, vm=False, ds=False):
        self._push(parse(text))
        if vm: self.vm_done = self.vm_seq; self.pend_vm = {}
        if ds: self.ds_done = self.ds_seq; self.pend_ds = {}; self.smem_out = False; self.pend_sm = set()
    def barrier(self):
        self._push(parse("s_barrier")); self.barriers += 1
    def _need(self, i):
        need = 0
        for p, ppos in self.hist:
            dist = self.pos - (ppos + p.states)
            n = 0
            vgw = {r for r in p.writes if r[0] in "va" and r not in ("vcc",)}
            sgw = p.writes - vgw - {"scc"}
            if p.kind in VALUK:
                if i.kind == "mfma" and vgw & i.reads: n = max(n, 2)
                if i.kind in ("perm", "dpp") and vgw & i.reads: n = max(n, 2)
                if i.kind == "rdlane" and vgw & i.reads: n = max(n, 1)
                if p.kind == "trans" and i.kind in VALUK and i.kind != "trans" and vgw & i.reads: n = max(n, 1)
                if p.kind == "dot" and vgw & (i.reads | i.writes) and not (i.kind == "dot" and i.op == p.op and not (vgw & (i.reads - i.srcc))): n = max(n, 3)
                if sgw & i.reads:
                    if i.kind in VALUK or i.kind == "mfma": n = max(n, 4 if i.kind == "rdlane" else 2)
                    if i.kind in ("vm", "vmlds"): n = max(n, 5)
                    if i.kind in ("salu", "ctl", "smem"): n = max(n, 1)
            if p.kind == "mfma":
                big = 8 if p.passes == 4 else 12
                if i.kind == "mfma":
                    if p.writes & i.srcab: n = max(n, big)
                    if p.writes & i.srcc and not (p.writes == i.srcc and p.passes == i.passes): n = max(n, big - 2)
                    if p.writes & i.writes and not (p.writes == i.srcc): n = max(n, big - 2)
                elif i.kind in VALUK or i.kind in ("vm", "vmlds", "ds"):
                    if p.writes & (i.reads | i.writes): n = max(n, big)
                    if i.kind in VALUK and p.srcc & i.writes: n = max(n, 3 if p.passes == 4 else 7)
            if p.wide_data & i.writes: n = max(n, 2 if i.kind in VALUK or i.kind == "mfma" else 1)
            if p.kind == "salu" and "m0" in p.writes and i.kind == "vmlds": n = max(n, 1)
            need = max(need, n - dist)
        return need
    def __call__(self, text):
        tok = None
        for l in text.split("\n"):
            l = l.strip()
            if not l or l.startswith(";"): continue
            if l.endswith(":"): self.lines.append(l); continue
            tok = self.ins(l)
        return tok
    def ins(self, text):
        i = parse(text)
        touched = i.reads | i.writes
        vmn = max([self.pend_vm[r] for r in touched if r in self.pend_vm], default=None)
        dsn = max([self.pend_ds[r] for r in touched if r in self.pend_ds], default=None)
        if touched & self.pend_sm: dsn = self.ds_seq
        self.wait(vmn, dsn)
        n = self._need(i)
        if n > 0:
            self.stat["nops"] += 1; self.stat["nopstates"] += n
            self.log_nops.append((len(self.lines), n, text))
            while n > 0:
                k = min(n, 16); self._push(parse(f"s_nop {k-1}")); n -= k
        if i.op == "s_barrier": self.barriers += 1
        self._push(i)
        if i.kind in ("vm", "vmlds"):
            self.vm_seq += 1
            for r in i.writes: self.pend_vm[r] = self.vm_seq
            return self.vm_seq
        if i.kind == "ds":
            self.ds_seq += 1
            for r in i.writes: self.pend_ds[r] = self.ds_seq
            return self.ds_seq
        if i.kind == "smem":
            self.smem_out = True; self.pend_sm |= i.writes
        return None
    def flush_hazards(self, states=16):
        self.hist = []

def vr(b, n=1): return f"v{b}" if n == 1 else f"v[{b}:{b+n-1}]"
def ar(b, n=1): return f"a{b}" if n == 1 else f"a[{b}:{b+n-1}]"
def sr(b, n=1): return f"s{b}" if n == 1 else f"s[{b}:{b+n-1}]"
```

```python
from emit import *
import layout as L

RS = 1312

def gen_k0(store_mod="", warm_label=None, warm_bytes=0):
    e = Em()
    SM = (" " + store_mod) if store_mod else ""
    sW = 40; sBID = 2
    e("s_cmp_ge_u32 s2, 256")
    e("s_cbranch_scc1 K0_end")
    e("s_load_dwordx4 s[4:7], s[0:1], 0")
    e("s_load_dwordx2 s[8:9], s[0:1], 16")
    e("s_load_dwordx4 s[12:15], s[0:1], 32")
    e("s_load_dwordx2 s[16:17], s[0:1], 48")
    e("s_load_dwordx2 s[18:19], s[0:1], 72")
    e("v_lshrrev_b32 v1, 6, v0")
    e(f"v_readfirstlane_b32 s{sW}, v1")
    e("v_and_b32 v0, 63, v0")
    e("v_lshlrev_b32 v2, 4, v0")
    e("v_lshrrev_b32 v3, 4, v0")
    e("v_and_b32 v4, 15, v0")
    e("v_lshrrev_b32 v5, 2, v4")
    e("v_and_b32 v6, 3, v4")
    e("s_mov_b32 s24, s4\ns_mov_b32 s25, s5\ns_mov_b32 s26, 2621440\ns_mov_b32 s27, 0x20000")
    e(f"s_mov_b32 s28, s18\ns_mov_b32 s29, s19\ns_mov_b32 s30, {L.WS_USED}\ns_mov_b32 s31, 0x20000")
    e("s_mov_b32 s23, 0x20000")
    e(f"s_lshr_b32 s41, s{sW}, 1")
    e(f"s_and_b32 s42, s{sW}, 1")
    e("s_cmp_ge_u32 s2, 248\ns_cbranch_scc1 K0_misc")
    e("s_cmp_ge_u32 s2, 200\ns_cbranch_scc1 K0_t4")
    e("s_cmp_ge_u32 s2, 80\ns_cbranch_scc1 K0_t3")
    e("s_cmp_ge_u32 s2, 60\ns_cbranch_scc1 K0_t2")
    e("""s_mul_i32 s43, s2, 43
    s_lshr_b32 s43, s43, 7
    s_mul_i32 s49, s43, 3
    s_sub_u32 s49, s2, s49
    s_mov_b32 s20, s6
    s_mov_b32 s21, s7
    s_mov_b32 s22, 2457600
    s_mov_b32 s44, 3840
    s_mul_i32 s47, s49, 1280
    s_lshl_b32 s45, s43, 5
    s_lshl_b32 s50, s40, 3
    s_add_u32 s45, s45, s50
    s_mov_b32 s46, 4
    s_mov_b32 s48, 1
    s_branch K0_load""")
    e("K0_t2:")
    e("""s_sub_u32 s43, s2, 60
    s_mov_b32 s20, s8
    s_mov_b32 s21, s9
    s_mov_b32 s22, 819200
    s_mov_b32 s44, 1280
    s_mov_b32 s47, 0
    s_mov_b32 s48, 2
    s_mov_b32 s49, 0
    s_cmp_ge_u32 s43, 16
    s_cbranch_scc1 K0_t2x
    s_mul_i32 s45, s43, 40
    s_mul_i32 s50, s41, 20
    s_add_u32 s45, s45, s50
    s_lshl_b32 s50, s42, 3
    s_add_u32 s45, s45, s50
    s_mov_b32 s46, 4
    s_branch K0_load""")
    e("K0_t2x:")
    e("""s_sub_u32 s50, s43, 16
    s_lshl_b32 s50, s50, 3
    s_lshl_b32 s51, s42, 2
    s_add_u32 s50, s50, s51
    s_add_u32 s50, s50, s41
    s_mul_i32 s45, s50, 20
    s_add_u32 s45, s45, 16
    s_mov_b32 s46, 40
    s_branch K0_load""")
    e("K0_t3:")
    e("""s_sub_u32 s50, s2, 80
    s_cmp_ge_u32 s50, 60
    s_cselect_b32 s52, 1, 0
    s_cselect_b32 s20, s14, s12
    s_cselect_b32 s21, s15, s13
    s_cselect_b32 s51, 60, 0
    s_sub_u32 s50, s50, s51
    s_mul_i32 s43, s50, 43
    s_lshr_b32 s43, s43, 7
    s_mul_i32 s49, s43, 3
    s_sub_u32 s49, s50, s49
    s_mov_b32 s22, 1966080
    s_mov_b32 s44, 3072
    s_lshl_b32 s47, s49, 10
    s_lshl_b32 s45, s43, 5
    s_lshl_b32 s50, s40, 3
    s_add_u32 s45, s45, s50
    s_mov_b32 s46, 4
    s_mov_b32 s48, 3
    s_branch K0_load""")
    e("K0_t4:")
    e("""s_sub_u32 s43, s2, 200
    s_mov_b32 s20, s16
    s_mov_b32 s21, s17
    s_mov_b32 s22, 1966080
    s_mov_b32 s44, 1280
    s_mov_b32 s47, 0
    s_mov_b32 s48, 4
    s_mov_b32 s49, 0
    s_lshl_b32 s45, s43, 5
    s_lshl_b32 s50, s42, 1
    s_add_u32 s50, s50, s41
    s_lshl_b32 s50, s50, 3
    s_add_u32 s45, s45, s50
    s_mov_b32 s46, 4""")
    e("K0_load:")
    e.flush_hazards()
    e("""s_mul_i32 s53, s45, s44
    s_add_u32 s53, s53, s47
    s_mul_i32 s54, s46, s44
    s_add_u32 s54, s54, s53""")
    WD = 64
    e("s_mov_b32 s55, s53")
    for i in range(8):
        if i == 4: e("s_mov_b32 s55, s54")
        e(f"buffer_load_dwordx4 {vr(WD+4*i,4)}, v2, s[20:23], s55 offen")
        if i % 4 != 3: e("s_add_u32 s55, s55, s44")
    e("v_mul_lo_u32 v7, v3, s44")
    e("v_lshl_add_u32 v7, v4, 4, v7")
    e("v_add_u32 v7, 1024, v7")
    e("s_cmp_eq_u32 s48, 3\ns_cbranch_scc1 K0_nob")
    e.raw(f"buffer_load_dwordx4 {vr(WD+32,4)}, v7, s[20:23], s53 offen")
    e.raw(f"buffer_load_dwordx4 {vr(WD+36,4)}, v7, s[20:23], s54 offen")
    e("K0_nob:")
    e("s_branch K0_x")
    e("K0_misc:")
    e.flush_hazards()
    e("s_mov_b32 s48, 0")
    e("s_cmp_lg_u32 s2, 248\ns_cbranch_scc1 K0_warm")
    e("v_mov_b32 v64, 0\nv_mov_b32 v65, 0\nv_mov_b32 v66, 0\nv_mov_b32 v67, 0")
    e(f"s_lshl_b32 s55, s{sW}, 13\ns_add_u32 s55, s55, {L.FL}")
    for i in range(8):
        e.raw(f"buffer_store_dwordx4 v[64:67], v2, s[28:31], s55 offen offset:{(i%4)*1024}{SM}")
        if i == 3: e.raw("s_add_u32 s55, s55, 4096")
    e("s_branch K0_x")
    e("K0_warm:")
    if warm_label:
        per = (warm_bytes + 27) // 28 // 1024 * 1024 + 1024
        e.raw("s_getpc_b64 s[56:57]")
        e.raw("K0_pc:")
        e.raw(f"s_add_u32 s56, s56, {warm_label}-K0_pc")
        e.raw("s_addc_u32 s57, s57, 0")
        e.raw(f"s_sub_u32 s55, s2, 249\ns_lshl_b32 s55, s55, 2\ns_add_u32 s55, s55, s{sW}\ns_mul_i32 s55, s55, {per}")
        e.raw(f"v_add_u32 v8, s55, v2")
        for i in range(per // 1024):
            e.raw(f"v_min_u32 v9, {warm_bytes-16}, v8")
            e.raw(f"global_load_dwordx4 v[64:67], v9, s[56:57]")
            e.raw("v_add_u32 v8, 1024, v8")
    e("K0_x:")
    e.flush_hazards()
    e.vm_seq = 10; e.vm_done = 0
    e("""s_lshr_b32 s56, s2, 1
    s_and_b32 s57, s2, 1
    s_lshl_b32 s58, s56, 4
    v_add_u32 v8, s58, v4
    v_and_b32 v9, 1023, v8
    v_lshrrev_b32 v8, 10, v8
    v_lshl_add_u32 v8, v9, 1, v8
    s_movk_i32 s58, 1280
    v_mul_lo_u32 v8, v8, s58
    v_lshl_add_u32 v8, v3, 3, v8
    s_mul_i32 s59, s57, 10
    s_add_u32 s59, s59, s40
    s_lshl_b32 s60, s59, 6""")
    XD = 16
    for i in range(2):
        e.raw(f"buffer_load_dwordx2 {vr(XD+4*i,2)}, v8, s[24:27], s60 offen offset:{256*i}")
        e.raw(f"buffer_load_dwordx2 {vr(XD+4*i+2,2)}, v8, s[24:27], s60 offen offset:{256*i+32}")
    for i in range(4): e(f"v_mov_b32 v{XD+8+i}, 0")
    e(f"s_cmp_ge_u32 s{sW}, 2\ns_cbranch_scc1 K0_x2")
    e.raw(f"buffer_load_dwordx2 {vr(XD+8,2)}, v8, s[24:27], s60 offen offset:512")
    e.raw(f"buffer_load_dwordx2 {vr(XD+10,2)}, v8, s[24:27], s60 offen offset:544")
    e("K0_x2:")
    e(f"s_mul_i32 s61, s{sW}, {8*RS}")
    e("v_add_u32 v10, s61, v2")
    e(f"s_movk_i32 s58, {RS}")
    e("v_mul_lo_u32 v11, v3, s58")
    e("v_lshl_add_u32 v11, v4, 4, v11")
    e("v_add_u32 v11, s61, v11")
    e("v_add_u32 v11, 1024, v11")
    e("v_mov_b32 v60, 0x3f803f80\nv_mov_b32 v61, v60\nv_mov_b32 v62, v60\nv_mov_b32 v63, v60")
    e.force_wait("s_waitcnt vmcnt(0)", vm=True)
    e("s_cmp_eq_u32 s48, 0\ns_cbranch_scc1 K0_nolds")
    for i in range(8): e(f"ds_write_b128 v10, {vr(WD+4*i,4)} offset:{i*RS}")
    e(f"ds_write_b128 v11, {vr(WD+32,4)}")
    e(f"ds_write_b128 v11, {vr(WD+36,4)} offset:{4*RS}")
    e("K0_nolds:")
    e.flush_hazards()
    e(f"s_mul_i32 s61, s56, 20480\ns_lshl_b32 s62, s59, 10\ns_add_u32 s61, s61, s62\ns_add_u32 s61, s61, {L.XA[0]}")
    e(f"buffer_store_dwordx4 {vr(XD,4)}, v2, s[28:31], s61 offen{SM}")
    e("s_add_u32 s61, s61, 4096")
    e(f"buffer_store_dwordx4 {vr(XD+4,4)}, v2, s[28:31], s61 offen{SM}")
    e("s_add_u32 s61, s61, 4096")
    e(f"s_cmp_ge_u32 s{sW}, 2\ns_cbranch_scc1 K0_x3")
    e.raw(f"buffer_store_dwordx4 {vr(XD+8,4)}, v2, s[28:31], s61 offen{SM}")
    e("K0_x3:")
    e("v_mov_b32 v12, 0\nv_mov_b32 v13, 0")
    for i in range(12):
        e(f"v_dot2_f32_bf16 v12, v{XD+i}, v60, v12")
        e(f"v_dot2_f32_bf16 v13, v{XD+i}, v{XD+i}, v13")
    e("""v_permlane16_swap_b32 v12, v13
    v_add_f32 v12, v12, v13
    v_mov_b32 v13, v12
    v_permlane32_swap_b32 v12, v13
    v_add_f32 v12, v12, v13
    v_mov_b32 v13, v12
    v_permlane16_swap_b32 v12, v13""")
    e(f"""s_lshl_b32 s61, s56, 10
    s_lshl_b32 s62, s57, 1
    s_add_u32 s62, s62, s41
    s_lshl_b32 s62, s62, 8
    s_add_u32 s61, s61, s62
    s_lshl_b32 s62, s42, 3
    s_add_u32 s61, s61, s62
    s_add_u32 s61, s61, {L.ST[0]}
    s_mov_b32 exec_lo, 0xffff
    s_mov_b32 exec_hi, 0""")
    e(f"buffer_store_dwordx2 v[12:13], v2, s[28:31], s61 offen{SM}")
    e("s_mov_b64 exec, -1")
    e.force_wait("s_waitcnt lgkmcnt(0)", ds=True)
    e.barrier()
    e("s_cmp_eq_u32 s48, 0\ns_cbranch_scc1 K0_end")
    e("s_cmp_eq_u32 s48, 3\ns_cbranch_scc1 K0_b3")
    e(f"""v_lshl_add_u32 v14, v3, 2, v5
    v_mul_lo_u32 v14, v14, s58
    s_mul_i32 s61, s{sW}, 320
    v_add_u32 v15, s61, v14
    v_lshl_add_u32 v14, v6, 3, v15""")
    e("s_cmp_eq_u32 s48, 1\ns_cbranch_scc1 K0_b1")
    FR = 64
    e(f"""s_cmp_eq_u32 s48, 2
    s_mov_b32 s62, {48*5120}
    s_mov_b32 s63, {L.W4}
    s_cselect_b32 s62, {20*5120}, s62
    s_cselect_b32 s63, {L.W2}, s63
    s_lshl_b32 s64, s{sW}, 1
    s_mul_i32 s64, s64, s62
    s_add_u32 s63, s63, s64
    s_mul_i32 s64, s43, 5120
    s_add_u32 s63, s63, s64""")
    for i in range(10):
        e(f"ds_read_b64_tr_b16 {vr(FR+4*i,2)}, v14 offset:{32*i}")
        e(f"ds_read_b64_tr_b16 {vr(FR+4*i+2,2)}, v14 offset:{32*i+16*RS}")
    e("s_add_u32 s64, s63, 4096")
    for i in range(10):
        if i == 5: e("s_add_u32 s63, s63, s62\ns_add_u32 s64, s63, 4096")
        t = i if i < 5 else (i - 5 + 4) % 5
        if t < 4: e(f"buffer_store_dwordx4 {vr(FR+4*i,4)}, v2, s[28:31], s63 offen offset:{t*1024}{SM}")
        else: e(f"buffer_store_dwordx4 {vr(FR+4*i,4)}, v2, s[28:31], s64 offen{SM}")
    e("s_endpgm")
    e("K0_b1:")
    e.flush_hazards(); e.ds_done = e.ds_seq; e.pend_ds = {}
    MSTR = 20 * 8192
    e(f"""v_lshrrev_b32 v16, 1, v6
    v_mul_u32_u24 v16, 80, v16
    v_and_b32 v17, 1, v6
    v_mul_u32_u24 v17, 40, v17
    v_add3_u32 v15, v15, v16, v17""")
    for i in range(8):
        off = 80 * (i >> 1) + 40 * (i & 1)
        e(f"ds_read_b64_tr_b16 {vr(FR+4*i,2)}, v14 offset:{off}")
        e(f"ds_read_b64_tr_b16 {vr(FR+4*i+2,2)}, v14 offset:{off+16*RS}")
    for u in range(2):
        e(f"ds_read_b64_tr_b16 {vr(FR+32+4*u,2)}, v15 offset:{160*u+32}")
        e(f"ds_read_b64_tr_b16 {vr(FR+32+4*u+2,2)}, v15 offset:{160*u+32+16*RS}")
    e(f"""s_cmp_eq_u32 s49, 1
    s_cselect_b32 s61, 2, 0
    s_cselect_b32 s66, 8, 0
    s_cmp_eq_u32 s49, 2
    s_cselect_b32 s61, 5, s61
    s_cselect_b32 s62, 7, 4
    s_lshl_b32 s63, s{sW}, 2
    s_mul_i32 s64, s63, {MSTR}
    s_lshl_b32 s65, s43, 13
    s_add_u32 s64, s64, s65
    s_add_u32 s64, s64, {L.W1}
    s_lshl_b32 s65, s61, 10
    s_add_u32 s65, s65, s64
    s_lshl_b32 s67, s62, 10
    s_add_u32 s67, s67, s64
    s_lshl_b32 s68, s66, 4
    s_add_u32 s67, s67, s68
    v_lshrrev_b32 v16, 3, v4
    s_mov_b32 s68, {MSTR}
    v_mul_lo_u32 v17, v16, s68
    v_and_b32 v18, 7, v4
    v_lshl_add_u32 v19, v3, 4, v18
    v_lshl_add_u32 v17, v19, 4, v17
    s_mul_i32 s69, s63, 25600
    s_mul_i32 s70, s43, 1280
    s_add_u32 s69, s69, s70
    s_add_u32 s69, s69, {L.CSP}
    s_lshl_b32 s70, s61, 6
    s_add_u32 s70, s70, s69
    s_lshl_b32 s71, s62, 4
    s_add_u32 s71, s71, s66
    s_lshl_b32 s71, s71, 2
    s_add_u32 s71, s71, s69
    v_mul_u32_u24 v16, 25600, v16
    v_lshl_add_u32 v16, v18, 2, v16
    v_lshlrev_b32 v18, 2, v4""")
    CS = 112
    for i in range(8):
        e(f"buffer_store_dwordx4 {vr(FR+4*i,4)}, v2, s[28:31], s65 offen offset:{(i&1)*1024}{SM}")
        e(f"v_mfma_f32_16x16x32_bf16 {vr(CS+4*i,4)}, v[60:63], {vr(FR+4*i,4)}, 0")
        if i & 1: e(f"s_add_u32 s65, s65, {MSTR}")
    for u in range(2):
        e(f"buffer_store_dwordx4 {vr(FR+32+4*u,4)}, v17, s[28:31], s67 offen{SM}")
        e(f"v_mfma_f32_16x16x32_bf16 {vr(CS+32+4*u,4)}, v[60:63], {vr(FR+32+4*u,4)}, 0")
        e(f"s_add_u32 s67, s67, {2*MSTR}")
    e("s_mov_b32 exec_lo, 0xffff\ns_mov_b32 exec_hi, 0")
    for i in range(8):
        e(f"buffer_store_dword v{CS+4*i}, v18, s[28:31], s70 offen offset:{(i&1)*64}{SM}")
        if i & 1: e(f"s_add_u32 s70, s70, 25600")
    for u in range(2):
        e(f"buffer_store_dword v{CS+32+4*u}, v16, s[28:31], s71 offen{SM}")
        e(f"s_add_u32 s71, s71, 51200")
    e("s_endpgm")
    e("K0_b3:")
    e.flush_hazards(); e.ds_done = e.ds_seq; e.pend_ds = {}
    e(f"""v_lshrrev_b32 v14, 1, v3
    v_lshl_add_u32 v14, v14, 2, v5
    v_mul_lo_u32 v14, v14, s58
    v_and_b32 v15, 1, v3
    v_lshl_add_u32 v14, v15, 5, v14
    v_lshl_add_u32 v14, v6, 3, v14
    s_lshl_b32 s61, s{sW}, 8
    v_add_u32 v14, s61, v14""")
    for tl in range(4):
        for ee in range(2):
            i = tl * 2 + ee
            off = 64 * tl + ee * 8 * RS
            e(f"ds_read_b64_tr_b16 {vr(FR+4*i,2)}, v14 offset:{off}")
            e(f"ds_read_b64_tr_b16 {vr(FR+4*i+2,2)}, v14 offset:{off+16*RS}")
    e(f"""s_lshl_b32 s61, s49, 4
    s_lshl_b32 s62, s{sW}, 2
    s_add_u32 s61, s61, s62
    s_mul_i32 s65, s43, 12288
    s_add_u32 s65, s65, {L.W3}
    s_mul_i32 s66, s43, 1280
    s_add_u32 s66, s66, {L.CSP+512}
    v_lshlrev_b32 v18, 2, v0""")
    CS = 112
    for tl in range(4):
        e(f"""s_mul_i32 s62, s61, 43
        s_lshr_b32 s62, s62, 7
        s_mul_i32 s63, s62, 3
        s_sub_u32 s63, s61, s63
        s_lshl_b32 s63, s63, 1
        s_add_u32 s63, s63, s52
        s_mul_i32 s64, s62, 245760
        s_add_u32 s64, s64, s65
        s_lshl_b32 s67, s63, 10
        s_add_u32 s64, s64, s67
        s_add_u32 s67, s64, 6144
        s_mul_i32 s62, s62, 25600
        s_lshl_b32 s63, s63, 7
        s_add_u32 s62, s62, s63
        s_add_u32 s{72+tl}, s62, s66
        s_add_u32 s61, s61, 1""")
        e(f"buffer_store_dwordx4 {vr(FR+8*tl,4)}, v2, s[28:31], s64 offen{SM}")
        e(f"v_mfma_f32_32x32x16_bf16 {vr(CS+16*tl,16)}, v[60:63], {vr(FR+8*tl,4)}, 0")
        e(f"buffer_store_dwordx4 {vr(FR+8*tl+4,4)}, v2, s[28:31], s67 offen{SM}")
        e(f"v_mfma_f32_32x32x16_bf16 {vr(CS+16*tl,16)}, v[60:63], {vr(FR+8*tl+4,4)}, {vr(CS+16*tl,16)}")
    e("s_mov_b32 exec_hi, 0")
    for tl in range(4):
        e(f"buffer_store_dword v{CS+16*tl}, v18, s[28:31], s{72+tl} offen{SM}")
    e("K0_end:")
    e("s_endpgm")
    return e

if __name__ == "__main__":
    from asmlib import wrap, NAME
    e = gen_k0()
    open("k0_only.s", "w").write(wrap([dict(name="prep_kernel", body=e.text(), grid=256, block=256, lds=32*RS, vgpr=176, accum=176)]))
    print(e.stat, e.log_nops)
```

```python
import numpy as np
S, D, H, DH, F = 2048, 640, 32, 20, 1536
XA = [0x000000, 0x280000, 0x500000, 0x780000]
OA = [0xA00000, 0xC80000]
HA = [0xF00000, 0x1500000]
W1 = 0x1B00000
W2 = 0x1D80000
W3 = 0x1E80000
W4 = 0x2240000
ST = [0x2420000, 0x2440000, 0x2460000, 0x2480000]
CSP = 0x24A0000
HX = 0x2520000
HST = 0x2570000
FL = 0x2580000
FL_BYTES = 16 * 16 * 128
DBG = 0x2600000
WS_USED = 0x2700000

def row_token(r):
    return 2 * (r & 1023) + (r >> 10)

def phi_x(s, g, j):
    return 32 * s + 16 * (j >> 2) + 4 * g + (j & 3)
def phi_o(s, g, j):
    half, r = j >> 2, j & 3
    if s < 16: return (2 * s + half) * 20 + 4 * g + r
    e = s - 16
    return (2 * (4 * e + g) + half) * 20 + 16 + r
def phi_h(s, g, j):
    half, r = j >> 2, j & 3
    return 32 * s + 8 * (2 * (g >> 1) + half) + 4 * (g & 1) + r

def kmap(phi, nks):
    m = np.zeros((nks, 4, 8), np.int64)
    for s in range(nks):
        for g in range(4):
            for j in range(8): m[s, g, j] = phi(s, g, j)
    return m

def w1_col(m, t, n):
    h0, h1 = 2 * m, 2 * m + 1
    if t == 0: return h0 * 20 + n
    if t == 1: return h1 * 20 + n
    if t == 2: return 640 + h0 * 20 + n
    if t == 3: return 640 + h1 * 20 + n
    if t == 4:
        q, r = n >> 2, n & 3
        return (640 if q >= 2 else 0) + (h0 if q % 2 == 0 else h1) * 20 + 16 + r
    if t == 5: return 1280 + h0 * 20 + n
    if t == 6: return 1280 + h1 * 20 + n
    if n >= 8: return -1
    return 1280 + (h0 if n < 4 else h1) * 20 + 16 + (n & 3)

def act_to_frag(x_rows, phi, nks):
    km = kmap(phi, nks)
    xr = x_rows.reshape(128, 16, -1)
    out = xr[:, :, km]
    return np.ascontiguousarray(out.transpose(0, 2, 3, 1, 4)).reshape(128, nks, 64, 8)
def frag_to_act(fr, phi, nks):
    km = kmap(phi, nks)
    fr = fr.reshape(128, nks, 4, 16, 8)
    K = nks * 32
    out = np.zeros((128, 16, K), fr.dtype)
    out[:, :, km.reshape(-1)] = fr.transpose(0, 3, 1, 2, 4).reshape(128, 16, K)
    return out.reshape(2048, K)

def w16_blocks(W, cols, phi, nks):
    km = kmap(phi, nks)
    cols = np.array(cols)
    Wp = np.concatenate([W, np.zeros((W.shape[0], 1), W.dtype)], 1)
    g = Wp[km][:, :, :, cols]
    return np.ascontiguousarray(g.transpose(0, 3, 1, 4, 2)).reshape(nks, len(cols), 64, 8)

def ref_w1(wqkv):
    return np.stack([w16_blocks(wqkv, [[w1_col(m, t, n) for n in range(16)] for t in range(8)], phi_x, 20) for m in range(16)])
def jt(j, tp):
    return (tp + (j & 1)) % 5
def ref_w2(wo):
    return np.stack([w16_blocks(wo, [[80 * j + 16 * jt(j, t) + n for n in range(16)] for t in range(5)], phi_o, 20) for j in range(8)])
def ref_w4(wd):
    return np.stack([w16_blocks(wd, [[80 * j + 16 * jt(j, t) + n for n in range(16)] for t in range(5)], phi_h, 48) for j in range(8)])
def ref_w3(wg, wu):
    km = kmap(phi_x, 20)
    out = np.zeros((16, 20, 2, 6, 2, 32, 8), wg.dtype)
    for m in range(16):
        for T in range(3):
            for mat, W in enumerate((wg, wu)):
                c = 96 * m + 32 * T + np.arange(32)
                g = W[km][:, :, :, c]
                g = g.reshape(20, 2, 2, 8, 32)
                out[m, :, :, 2 * T + mat] = g.transpose(0, 1, 2, 4, 3)
    return out.reshape(16, 20, 2, 6, 64, 8)
```

```python
from emit import *
import layout as L
import struct

def f2u(x): return struct.unpack("<I", struct.pack("<f", x))[0]
LOG2E = 1.4426950408889634
KB = 1024
CS_OFF = 156 * KB
STB_OFF = CS_OFF + 1280
HALO_OFF = 136 * KB
XB_OFF = 136 * KB
W2_OFF = 24 * KB
PART_OFF = 96 * KB
WS = "s[4:7]"; OUT = "s[8:11]"
sW, sG, sM, sLOC = 12, 13, 14, 15
sAX, sHAL0, sW1, sW3, sW2, sW4 = 16, 17, 18, 19, 20, 21
sA2, sA4 = 22, 26
sXA, sXB, sSTO, sSTI, sSTH0, sHAL1, sSTH1, sOM, sOX, sH, sFL, sFLP = 30, 31, 32, 33, 34, 35, 36, 37, 38, 39, 40, 41
sM2, sM3, sM1, sBUD, sOA, sOB = 42, 43, 44, 45, 46, 47
sT = 48
mG0, mG1, mLT2, mC8, mH1, mODD = 56, 58, 60, 62, 64, 66
sFIRST, sHW = 68, 69
sSTAMP = 70
vL16, vL16B, vA3, vLDS1, vLDS2, vHK = 0, 1, 2, 4, 5, 6
vPOLL, vONE, vOX, vHS, vST3 = 9, 10, 11, 12, 13
vXP = 246

class Obj:
    def __init__(s, name, off, size, private=False):
        s.name, s.off, s.size, s.private = name, off, size, private
        s.vm = 0; s.dsw = 0; s.landed = None; s.lastread = 0; s.done = False; s.released = None

class Main:
    def __init__(self, stamps=False, stop=None, cfg=None):
        self.e = Em(); self.objs = []; self.stamps = stamps; self.nstamp = 0; self.stop = stop
        self.stamp_names = []
        self.cfg = cfg or {}
        self.streams = {}
    def alloc(self, name, off, size, private=False):
        for o in self.objs:
            if o.off < off + size and off < o.off + o.size:
                assert o.released is not None, f"LDS WAR: {name} over live {o.name}"
        self.objs = [o for o in self.objs if not (o.off < off + size and off < o.off + o.size and o.off >= off and o.off + o.size <= off + size)]
        o = Obj(name, off, size, private); self.objs.append(o); return o
    def barrier(self):
        e = self.e; e.barrier()
        for o in self.objs:
            if o.landed is None and o.vm <= e.vm_done and o.dsw <= e.ds_done: o.landed = e.barriers
            if o.done and o.released is None and o.lastread <= e.ds_done: o.released = e.barriers
    def lds(self, off, bases=(vL16, vLDS1, vLDS2)):
        return f"v{bases[off >> 16]} offset:{off & 0xffff}"
    def rd(self, o, dst, off, n=4, bases=(vL16, vLDS1, vLDS2), last=False):
        e = self.e
        if o.private: e.wait(vm=o.vm, ds=o.dsw if o.dsw else None)
        else: assert o.landed is not None, f"LDS RAW: {o.name} not landed"
        op = {4: "ds_read_b128", 2: "ds_read_b64", 1: "ds_read_b32"}[n]
        t = e(f"{op} {vr(dst, n)}, {self.lds(o.off + off, bases)}")
        o.lastread = t
        if last: o.done = True
        return t
    def soff(self, key, reg, base, const):
        cur = self.streams.get(key)
        if cur and cur[0] == base and 0 <= const - cur[1] <= 4095 - 15:
            return reg, const - cur[1]
        self.e(f"s_add_u32 s{reg}, s{base}, {const}")
        self.streams[key] = (base, const)
        return reg, 0
    def stamp(self, name):
        if not self.stamps: return
        r = sSTAMP + 2 * self.nstamp
        assert r + 1 <= 101
        self.e(f"s_memtime s[{r}:{r+1}]"); self.nstamp += 1; self.stamp_names.append(name)
    def dma_chunk(self, name, ldsoff, nblk, mreg, base, gconst, key="w", mod=""):
        st = {}
        def mk(p):
            def f():
                e = self.e
                if p == 0:
                    st["o"] = self.alloc(name, ldsoff, 4 * nblk * KB); self.named[name] = st["o"]
                if self.m0_owner != name:
                    e(f"s_add_u32 m0, s{mreg}, {ldsoff}")
                    e(f"s_add_u32 s{sT+1}, s{base}, {gconst}")
                self.m0_owner = name
                st["o"].vm = e(f"buffer_load_dwordx4 v{vL16}, {WS}, s{sT+1} offen offset:{p*1024}{mod} lds")
            return f
        return [mk(p) for p in range(nblk)]
    def w1_chunk(self, l, c):
        slot = c if c < 17 else c - 17
        return self.dma_chunk(f"w1_{l}_{c}", slot * 8 * KB, 2, sM2, sW1, c * 8192)
    W3SLOT = {**{c: c for c in range(13)}, 13: 0, 14: 1, 15: 2, 16: 8, 17: 9, 18: 10, 19: 11}
    def w3_chunk(self, l, c):
        return self.dma_chunk(f"w3_{l}_{c}", self.W3SLOT[c] * 12 * KB, 3, sM3, sW3, c * 12288)
    def w2_block(self, l, b):
        it = self.dma_chunk(f"w2_{l}_{b}", W2_OFF + b * 4 * KB, 1, sM1, sW2, b * 1024)
        def f():
            it[0](); self.named[f"w2_{l}_{b}"].private = True
        return [f]
    def halo_block(self, l, i):
        return self.dma_chunk(f"ha_{l}_{i}", HALO_OFF + i * 4 * KB, 1, sM1, sHAL0 if l == 0 else sHAL1, i * 4096, mod=" sc1")
    def w4_load(self, n):
        def f():
            r, imm = self.soff("w4", sT + 2, sW4, n * 1024)
            self.e(f"buffer_load_dwordx4 {ar(4*n,4)}, v{vL16}, {WS}, s{r} offen offset:{imm}")
        return [f]
    def loop(self, mf, pre, post):
        for i, m in enumerate(mf):
            for f in pre.get(i, []): f() if callable(f) else self.e(f)
            self.e(m)
            for f in post.get(i, []): f() if callable(f) else self.e(f)
    def signal(self, slot):
        e = self.e
        e.wait_all(vm=True, ds=True)
        self.barrier()
        lab = e.label("SG"); lab2 = e.label("SG")
        e(f"s_cmp_lg_u32 s{sW}, 0\ns_cbranch_scc1 {lab}")
        e(f"s_lshl_b32 s{sT}, s{sM}, 2\ns_add_u32 s{sT}, s{sT}, s{sFL}\ns_add_u32 s{sT}, s{sT}, {slot*2048}")
        e("s_mov_b64 exec, 1")
        e(f"s_cmp_eq_u32 s{sLOC}, 0\ns_cbranch_scc1 {lab2}")
        e.raw(f"buffer_store_dword v{vONE}, off, {WS}, s{sT}")
        e("s_mov_b64 exec, -1")
        e(f"s_branch {lab}")
        e.place(lab2)
        e.raw("buffer_wbl2 sc1\ns_waitcnt vmcnt(0)")
        e.raw(f"buffer_store_dword v{vONE}, off, {WS}, s{sT} sc1")
        e("s_mov_b64 exec, -1")
        e.place(lab)
        self.streams = {}
    def poll(self, sreg, const, voff, tmp, acquire=True):
        e = self.e
        assert e.vm_done == e.vm_seq
        top = e.label("PL"); done = e.label("PL")
        e(f"s_add_u32 s{sT}, s{sreg}, {const}")
        e.place(top)
        e.raw(f"buffer_load_dword v{tmp}, v{voff}, {WS}, s{sT} offen sc1")
        e.raw("s_waitcnt vmcnt(0)")
        e.raw(f"v_cmp_eq_u32 vcc, 0, v{tmp}")
        e.raw("s_nop 1")
        e.raw("s_cmp_eq_u64 vcc, 0")
        e.raw(f"s_cbranch_scc1 {done}")
        e.raw(f"s_sub_u32 s{sBUD}, s{sBUD}, 1")
        e.raw(f"s_cbranch_scc0 {top}")
        e.raw(f"s_mov_b32 s{sBUD}, 0")
        e.place(done)
        if acquire:
            lab = e.label("PL")
            e.raw(f"s_cmp_lg_u32 s{sLOC}, 0\ns_cbranch_scc1 {lab}\nbuffer_inv sc1\ns_waitcnt vmcnt(0)")
            e.place(lab)
        e.flush_hazards()
    def finish(self):
        e = self.e
        if self.stamps:
            self.stamp("end")
            e.force_wait("s_waitcnt vmcnt(0) lgkmcnt(0)", vm=True, ds=True)
            e(f"s_lshl_b32 s{sT}, s2, 2\ns_add_u32 s{sT}, s{sT}, s{sW}\ns_lshl_b32 s{sT}, s{sT}, 7\ns_add_u32 s{sT}, s{sT}, {L.DBG}")
            e("s_mov_b64 exec, 1")
            for i in range(self.nstamp):
                e(f"v_mov_b32 v20, s{sSTAMP+2*i}")
                e(f"buffer_store_dword v20, off, {WS}, s{sT} offset:{4*i}")
        e("s_endpgm")

    def stats16(self, q, dst):
        e = self.e
        e(f"v_pk_add_f32 {vr(q,2)}, {vr(q,2)}, {vr(q+2,2)}")
        e(f"v_permlane16_swap_b32 v{q}, v{q+1}")
        e(f"v_add_f32 v{q}, v{q}, v{q+1}")
        e(f"v_mov_b32 v{q+1}, v{q}")
        e(f"v_permlane32_swap_b32 v{q}, v{q+1}")
        e(f"v_add_f32 v{q}, v{q}, v{q+1}")
        e(f"v_mov_b32 v{q+1}, v{q}")
        e(f"v_permlane16_swap_b32 v{q}, v{q+1}")
        self.stats_fin(q, dst)
    def stats_fin(self, q, dst):
        e = self.e
        e(f"v_mul_f32 v{dst}, 0x{f2u(1/640):x}, v{q}")
        e(f"v_mul_f32 v{q+1}, 0x{f2u(1/640):x}, v{q+1}")
        e(f"v_fma_f32 v{q+1}, -v{dst}, v{dst}, v{q+1}")
        e(f"v_max_f32 v{q+1}, 0, v{q+1}")
        e(f"v_add_f32 v{q+1}, 0x{f2u(1e-5):x}, v{q+1}")
        e(f"v_rsq_f32 v{dst+1}, v{q+1}")

    def prologue(self):
        e = self.e
        self.named = {}; self.m0_owner = None; self.t1_owner = None
        e("s_cmp_lt_u32 s2, 256\ns_cbranch_scc1 M_go\ns_endpgm")
        e.place("M_go")
        e("s_load_dwordx2 s[4:5], s[0:1], 72")
        e("s_load_dwordx2 s[8:9], s[0:1], 56")
        self.stamp("start")
        e(f"""v_lshrrev_b32 v1, 6, v0
        v_readfirstlane_b32 s{sW}, v1
        v_and_b32 v3, 63, v0
        v_lshlrev_b32 v{vL16}, 4, v3
        v_add_u32 v{vL16B}, 20480, v{vL16}
        v_add_u32 v{vLDS1}, 0x10000, v{vL16}
        v_add_u32 v{vLDS2}, 0x20000, v{vL16}
        s_and_b32 s48, s2, 7
        s_lshr_b32 s49, s2, 3
        s_lshr_b32 s50, s49, 4
        s_lshl_b32 s48, s48, 1
        s_add_u32 s{sG}, s48, s50
        s_and_b32 s{sM}, s49, 15
        s_mov_b32 s6, {L.WS_USED}
        s_mov_b32 s7, 0x20000
        s_mov_b32 s10, 2621440
        s_mov_b32 s11, 0x20000
        s_mov_b32 s{sBUD}, 0x20000
        s_lshl_b32 s48, s{sG}, 3
        s_lshl_b32 s49, s{sW}, 1
        s_add_u32 s49, s49, s48
        s_mul_i32 s{sAX}, s49, 20480
        s_lshl_b32 s{sSTI}, s49, 10
        s_mul_i32 s{sH}, s49, 49152
        s_mul_i32 s50, s{sM}, 3072
        s_add_u32 s{sH}, s{sH}, s50
        s_lshl_b32 s50, s{sM}, 10
        s_add_u32 s{sOM}, s{sAX}, s50
        s_lshr_b32 s50, s{sM}, 2
        s_add_u32 s50, s50, 16
        s_lshl_b32 s50, s50, 10
        s_and_b32 s51, s{sM}, 3
        s_lshl_b32 s51, s51, 8
        s_add_u32 s50, s50, s51
        s_add_u32 s{sOX}, s{sAX}, s50
        s_lshl_b32 s{sM1}, s{sW}, 10
        s_lshl_b32 s{sM2}, s{sW}, 11
        s_mul_i32 s{sM3}, s{sW}, 3072
        s_mul_i32 s{sW1}, s{sM}, 163840
        s_add_u32 s{sW1}, s{sW1}, s{sM2}
        s_add_u32 s{sW1}, s{sW1}, {L.W1}
        s_mul_i32 s{sW3}, s{sM}, 245760
        s_add_u32 s{sW3}, s{sW3}, s{sM3}
        s_add_u32 s{sW3}, s{sW3}, {L.W3}
        s_and_b32 s52, s{sM}, 7
        s_lshr_b32 s53, s{sM}, 3
        s_mul_i32 s{sW2}, s52, 102400
        s_mul_i32 s50, s{sW}, 25600
        s_add_u32 s{sW2}, s{sW2}, s50
        s_add_u32 s{sW2}, s{sW2}, {L.W2}
        s_mul_i32 s{sW4}, s52, 245760
        s_mul_i32 s50, s{sW}, 61440
        s_add_u32 s{sW4}, s{sW4}, s50
        s_add_u32 s{sW4}, s{sW4}, {L.W4}
        s_lshl_b32 s{sFL}, s{sG}, 7
        s_add_u32 s{sFL}, s{sFL}, {L.FL}
        s_and_b32 s50, s{sG}, 7
        s_cmp_eq_u32 s50, 0
        s_cselect_b32 s54, 0, 1
        s_sub_u32 s50, s48, s54
        s_mul_i32 s{sHAL0}, s50, 20480
        s_add_u32 s{sHAL0}, s{sHAL0}, s{sM1}
        s_lshl_b32 s{sSTH0}, s50, 10
        s_add_u32 s{sSTH0}, s{sSTH0}, {L.ST[0]}
        s_sub_u32 s50, s{sG}, s54
        s_mul_i32 s{sHAL1}, s50, 20480
        s_add_u32 s{sHAL1}, s{sHAL1}, s{sM1}
        s_add_u32 s{sHAL1}, s{sHAL1}, {L.HX}
        s_lshl_b32 s{sSTH1}, s50, 10
        s_add_u32 s{sSTH1}, s{sSTH1}, {L.HST}
        s_lshl_b32 s{sFLP}, s50, 7
        s_add_u32 s{sFLP}, s{sFLP}, {L.FL + 8*2048}
        s_add_u32 s50, s54, s{sW}
        s_cmp_eq_u32 s50, 0
        s_cselect_b32 s{sFIRST}, 1, 0
        s_lshl_b32 s50, s53, 2
        s_add_u32 s48, s48, s50
        s_add_u32 s50, s50, s{sW}
        s_cmp_eq_u32 s50, 7
        s_cselect_b32 s{sHW}, 1, 0""")
        for t in range(4):
            e(f"""s_add_u32 s50, s{sW}, {1+t}
            s_and_b32 s50, s50, 3
            s_add_u32 s50, s50, s48
            s_mul_i32 s{sA2+t}, s50, 20480
            s_mul_i32 s51, s{sW}, 5120
            s_add_u32 s{sA2+t}, s{sA2+t}, s51
            s_mul_i32 s{sA4+t}, s50, 49152
            s_mul_i32 s51, s{sW}, 12288
            s_add_u32 s{sA4+t}, s{sA4+t}, s51""")
        e(f"""s_add_u32 s48, s48, s{sW}
        s_lshr_b32 s50, s52, 1
        s_and_b32 s51, s52, 1
        s_lshl_b32 s{sSTO}, s48, 10
        s_lshl_b32 s53, s50, 8
        s_add_u32 s{sSTO}, s{sSTO}, s53
        s_lshl_b32 s53, s51, 3
        s_add_u32 s{sSTO}, s{sSTO}, s53
        s_mul_i32 s{sXB}, s48, 20480
        s_mul_i32 s50, s50, 5120
        s_add_u32 s{sXB}, s{sXB}, s50
        s_mul_i32 s50, s51, 3072
        s_add_u32 s{sXA}, s{sXB}, s50
        s_add_u32 s{sXB}, s{sXB}, 2048
        s_add_u32 s{sXB}, s{sXB}, s53
        s_and_b32 s50, s48, 63
        s_lshl_b32 s50, s50, 5
        s_lshr_b32 s53, s48, 6
        s_add_u32 s50, s50, s53
        s_mul_i32 s50, s50, 1280
        s_mul_i32 s53, s52, 160
        s_add_u32 s50, s50, s53
        s_lshl_b32 s53, s51, 5
        s_add_u32 s{sOA}, s50, s53
        s_cmp_eq_u32 s51, 0
        s_cselect_b32 s53, 128, 0
        s_add_u32 s{sOB}, s50, s53""")
        e(f"""v_lshrrev_b32 v14, 4, v3
        v_and_b32 v15, 15, v3
        v_lshlrev_b32 v{vPOLL}, 2, v15
        v_mov_b32 v{vONE}, 1
        v_lshlrev_b32 v{vOX}, 4, v15
        v_lshl_add_u32 v{vOX}, v14, 3, v{vOX}
        v_cmp_eq_u32 s[{mG0}:{mG0+1}], 0, v14
        v_cmp_eq_u32 s[{mG1}:{mG1+1}], 1, v14
        v_cmp_gt_u32 s[{mLT2}:{mLT2+1}], 2, v14
        v_cmp_lt_u32 s[{mC8}:{mC8+1}], 7, v15
        v_and_b32 v16, 1, v14
        v_cmp_eq_u32 s[{mODD}:{mODD+1}], 1, v16
        s_min_u32 s50, s{sW}, 2
        s_add_u32 s50, s50, 2
        s_lshl_b32 s50, s50, 10
        v_add_u32 v{vHK}, s50, v{vL16}
        v_add_u32 v{vHK+1}, s50, v{vLDS1}
        v_add_u32 v{vHK+2}, s50, v{vLDS2}
        s_cmp_ge_u32 s{sW}, 2
        s_cselect_b64 s[{mH1}:{mH1+1}], s[{mC8}:{mC8+1}], 0
        v_lshrrev_b32 v17, 1, v14
        v_lshlrev_b32 v17, 8, v17
        v_lshl_add_u32 v17, v15, 4, v17
        s_movk_i32 s50, 20480
        v_mad_u32_u24 v{vA3}, v16, s50, v17
        s_mov_b32 s50, 49152
        v_mad_u32_u24 v{vHS}, v16, s50, v17
        v_lshl_add_u32 v{vST3}, v16, 10, v17
        v_lshrrev_b32 v18, 1, v14
        v_lshl_add_u32 v{vST3}, v18, 8, v{vST3}""")
        e(f"s_getreg_b32 s50, hwreg(HW_REG_XCC_ID)\ns_and_b32 s50, s50, 15\ns_or_b32 s50, s50, 0x100\nv_mov_b32 v16, s50")
        e(f"s_lshl_b32 s51, s{sM}, 2\ns_add_u32 s51, s51, s{sFL}\ns_add_u32 s51, s51, {15*2048}")
        e("s_mov_b64 exec, 1")
        e(f"buffer_store_dword v16, off, {WS}, s51 sc1")
        e("s_mov_b64 exec, -1")
        e(f"""s_mul_i32 s50, s{sM}, 25600
        s_add_u32 s50, s50, {L.CSP}
        s_lshl_b32 s51, s{sW}, 8
        s_add_u32 s51, s51, s50
        s_add_u32 s50, s50, 1024
        s_movk_i32 s52, 1280
        v_lshlrev_b32 v16, 4, v15
        v_mad_u32_u24 v16, v14, s52, v16""")
        CP = 176
        for k, sreg in enumerate((51, 50)):
            for i in range(5):
                e(f"buffer_load_dwordx4 {vr(CP+20*k+4*i,4)}, v16, {WS}, s{sreg} offen")
                if i < 4: e(f"s_add_u32 s{sreg}, s{sreg}, 5120")
        e(f"buffer_load_dwordx4 {vr(vXP,4)}, v{vL16}, {WS}, s{sXA} offen offset:{L.XA[0]}")
        e(f"buffer_load_dwordx4 {vr(vXP+4,4)}, v{vL16}, {WS}, s{sXA} offen offset:{L.XA[0]+1024}")
        e(f"buffer_load_dwordx2 {vr(vXP+8,2)}, v{vL16}, {WS}, s{sXB} offen offset:{L.XA[0]}")
        self.cs_pending = CP
    def cs_reduce(self):
        e = self.e; CP = self.cs_pending
        o = self.alloc("cs", CS_OFF, 1280); self.named["cs"] = o
        e(f"s_lshl_b32 s50, s{sW}, 8\ns_add_u32 s50, s50, {CS_OFF}")
        e(f"v_and_b32 v16, 0xf0, v{vL16}\nv_add_u32 v17, s50, v16\nv_add_u32 v16, {CS_OFF+1024}, v16")
        for k in range(2):
            b = CP + 20 * k
            for i in (1, 2, 3, 4):
                e(f"v_pk_add_f32 {vr(b,2)}, {vr(b,2)}, {vr(b+4*i,2)}")
                e(f"v_pk_add_f32 {vr(b+2,2)}, {vr(b+2,2)}, {vr(b+4*i+2,2)}")
            for sw in ("v_permlane16_swap_b32", "v_permlane32_swap_b32"):
                for r in range(4): e(f"v_mov_b32 v{b+4+r}, v{b+r}")
                for r in range(4): e(f"{sw} v{b+r}, v{b+4+r}")
                e(f"v_pk_add_f32 {vr(b,2)}, {vr(b,2)}, {vr(b+4,2)}")
                e(f"v_pk_add_f32 {vr(b+2,2)}, {vr(b+2,2)}, {vr(b+6,2)}")
            o.dsw = e(f"ds_write_b128 v{17-k}, {vr(b,4)}")

    def p1(self, l):
        e = self.e; N = self.named
        ACC, HACC, AR, BR, NB, DA = 16, 80, 88, 128, 12, 5
        STQ = 216
        STA, CQ = 228, 234
        STB, CSA, CSAH, CSV = 176, 200, 220, 224
        acc = lambda t, i: ACC + (2 * t + i) * 4
        def aload(k):
            def f0():
                r, imm = self.soff("a", sT + 3, sAX, L.XA[2 * l] + k * 1024)
                e(f"buffer_load_dwordx4 {vr(AR+(k%DA)*8,4)}, v{vL16}, {WS}, s{r} offen offset:{imm} sc1")
            def f1():
                r, imm = self.soff("a", sT + 3, sAX, L.XA[2 * l] + k * 1024)
                e(f"buffer_load_dwordx4 {vr(AR+(k%DA)*8+4,4)}, v{vL16B}, {WS}, s{r} offen offset:{imm} sc1")
            return [f0, f1]
        e(f"s_add_u32 s{sT}, s{sSTI}, {L.ST[2*l]}")
        if l == 0:
            for k in range(DA):
                for f in aload(k) + self.w1_chunk(l, k) + self.halo_block(l, k): f()
                if k == 0:
                    e(f"buffer_load_dwordx4 {vr(STQ,4)}, v{vL16}, {WS}, s{sT} offen sc1")
                    e(f"buffer_load_dwordx4 {vr(STQ+4,4)}, v{vL16}, {WS}, s{sT} offen offset:1024 sc1")
                    e(f"buffer_load_dwordx4 {vr(STQ+8,4)}, v{vL16}, {WS}, s{sSTH0} offen sc1")
            q = []
            for c in range(5, 17): q += self.w1_chunk(l, c)
            self.cs_reduce()
        else:
            for k in range(DA):
                for f in aload(k) + self.halo_block(l, k): f()
                if k == 0:
                    e(f"buffer_load_dwordx4 {vr(STQ,4)}, v{vL16}, {WS}, s{sT} offen sc1")
                    e(f"buffer_load_dwordx4 {vr(STQ+4,4)}, v{vL16}, {WS}, s{sT} offen offset:1024 sc1")
                    e(f"buffer_load_dwordx4 {vr(STQ+8,4)}, v{vL16}, {WS}, s{sSTH1} offen sc1")
            q = []
            for c in range(12, 17): q += self.w1_chunk(l, c)
        reads = []
        std = (vL16, vLDS1, vLDS2); hk = (vHK, vHK + 1, vHK + 2)
        mf = []; use = []
        for k in range(20):
            n0 = len(reads)
            cn = f"w1_{l}_{k}"
            for t in range(8): reads.append((cn, t * 1024, std, False))
            reads.append((f"ha_{l}_{k//4}", (k % 4) * 1024, std, k % 4 == 3))
            reads.append((cn, 0, hk, False))
            reads.append((cn, 3072, hk, True))
            fr = lambda n: vr(BR + 4 * (n % NB), 4)
            for t in range(8):
                for i in range(2):
                    A = vr(AR + (k % DA) * 8 + 4 * i, 4); C = vr(acc(t, i), 4) if k else "0"
                    a, b = (fr(n0 + t), A) if t <= 4 else (A, fr(n0 + t))
                    mf.append(f"v_mfma_f32_16x16x32_bf16 {vr(acc(t,i),4)}, {a}, {b}, {C}"); use.append([n0 + t])
            mf.append(f"v_mfma_f32_16x16x32_bf16 {vr(HACC,4)}, {fr(n0+9)}, {fr(n0+8)}, {vr(HACC,4) if k else 0}"); use.append([n0 + 8, n0 + 9])
            mf.append(f"v_mfma_f32_16x16x32_bf16 {vr(HACC+4,4)}, {fr(n0+8)}, {fr(n0+10)}, {vr(HACC+4,4) if k else 0}"); use.append([n0 + 8, n0 + 10])
        pre, post = {}, {}
        P = lambda d, i, f: d.setdefault(i, []).append(f)
        AH = 7
        tok = {}
        def mkread(n):
            def f():
                nm, off, bases, last = reads[n]
                tok[n] = self.rd(N[nm], BR + 4 * (n % NB), off, 4, bases, last)
            return f
        lastuse = {}; firstuse = {}
        for i, u in enumerate(use):
            for n in u: lastuse[n] = i; firstuse.setdefault(n, i)
        BARK = [k for k in range(20) if k % 2 == 0]
        def mkbar(k):
            def f():
                need = [N[f"w1_{l}_{c}"].vm for c in (k, k + 1)] + [N[f"ha_{l}_{c//4}"].vm for c in (k, k + 1)]
                e.wait(vm=max(need)); self.barrier()
            return f
        for n in range(AH, len(reads)):
            pos = max(firstuse[n - AH], lastuse.get(n - NB, 0))
            if n % 11 == 0 and (n // 11) in BARK: P(post, pos, mkbar(n // 11))
            P(post, pos, mkread(n))
        for n in range(0, len(reads), 2):
            P(pre, firstuse[n], (lambda n=n: e.wait(ds=tok.get(n + 1, tok[n]))))
        gate = {}
        for c in (17, 18, 19): gate[c] = self.w1_chunk(l, c)
        w2q = [self.w2_block(l, b)[0] for b in range(25)]
        extra = list(self.cfg.get(("p1extra", l), lambda s: [])(self))
        for k in range(20):
            base = 18 * k
            if k >= 1 and k + DA - 1 < 20:
                f0, f1 = aload(k + DA - 1); P(post, base + 1, f0); P(post, base + 4, f1)
            slots = [base + 7, base + 10, base + 13, base + 16]
            items = []
            if k in (3, 4, 5): items += gate[14 + k]
            while len(items) < 4 and q: items.append(q.pop(0))
            if k >= 5:
                while len(items) < (4 if k + DA - 1 >= 20 else 3) and w2q and (24 + 4 * (25 - len(w2q)) + 3) // 8 <= (k // 2) * 2 - 2 + (0 if k % 2 == 0 else 0):
                    items.append(w2q.pop(0))
            while len(items) < 4 and extra: items.append(extra.pop(0))
            for s, f in zip(slots, items): P(post, s, f)
        assert not q and not extra, (len(q), len(extra))
        def stats_all():
            for x in range(3): self.stats16(STQ + 4 * x, STA + 2 * x)
            so = self.alloc(f"stb{l}", STB_OFF, 1536, private=True); N["stb"] = so
            e(f"s_mul_i32 s{sT}, s{sW}, 384\ns_add_u32 s{sT}, s{sT}, {STB_OFF}")
            e(f"v_and_b32 v{STQ}, 0x100, v{vL16}\nv_lshrrev_b32 v{STQ}, 2, v{STQ}\nv_add3_u32 v{STQ}, v{STQ}, v{vPOLL}, s{sT}")
            e(f"v_lshrrev_b32 v{STQ+1}, 8, v{vL16}\nv_lshl_add_u32 v{STQ+1}, v{STQ+1}, 4, s{sT}")
            for x in range(3):
                e(f"v_cndmask_b32 v{STQ+2+x}, v{STA+2*x}, v{STA+2*x+1}, s[{mODD}:{mODD+1}]")
                so.dsw = e(f"ds_write_b32 v{STQ}, v{STQ+2+x} offset:{128*x}")
            e.wait(ds=so.dsw)
            for x in range(3):
                e(f"ds_read_b128 {vr(STB+8*x,4)}, v{STQ+1} offset:{128*x}")
                so.lastread = e(f"ds_read_b128 {vr(STB+8*x+4,4)}, v{STQ+1} offset:{128*x+64}")
            so.done = True
            c = f2u(20 ** -0.5 * LOG2E)
            e(f"v_mul_f32 v{CQ}, 0x{c:x}, v{STA+1}\nv_mul_f32 v{CQ+1}, 0x{c:x}, v{STA+3}")
        e.wait(vm=max(N[f"w1_{l}_{c}"].vm for c in (0, 1)))
        e.wait(vm=N[f"ha_{l}_0"].vm, ds=e.ds_seq)
        self.barrier()
        for n in range(AH): mkread(n)()
        stats_all()
        self.stamp(f"p1.{l}.loop")
        self.loop(mf, pre, post)
        for f in w2q: f()
        e.wait(ds=e.ds_seq)
        self.barrier()
        self.stamp(f"p1.{l}.epi")
        for f in self.cfg.get(("p1post", l), lambda s: [])(self): f()
        cs = N["cs"]
        T0 = 172
        e(f"v_lshrrev_b32 v{T0}, 8, v{vL16}\nv_lshlrev_b32 v{T0}, 4, v{T0}\nv_add_u32 v{T0}, {CS_OFF}, v{T0}")
        e(f"v_add_u32 v{T0+1}, {CS_OFF}, v{vPOLL}")
        e(f"s_min_u32 s{sT}, s{sW}, 2\ns_lshl_b32 s{sT}, s{sT}, 6")
        e(f"v_add_u32 v{T0+2}, s{sT}, v{T0}\nv_add_u32 v{T0+3}, s{sT}, v{T0+1}")
        for t in range(5): e(f"ds_read_b128 {vr(CSA+4*t,4)}, v{T0} offset:{64*t}")
        e(f"ds_read_b128 {vr(CSAH,4)}, v{T0+2} offset:128")
        for t in range(3): e(f"ds_read_b32 v{CSV+t}, v{T0+1} offset:{320+64*t}")
        e(f"ds_read_b32 v{CSV+3}, v{T0+3} offset:320")
        BO, BP, BP0 = 88, 92, 96
        QS, KS, VS, T4P, M4 = 100, 116, 134, 152, 156
        e(f"v_lshrrev_b32 v{T0}, 8, v{vL16}\nv_lshrrev_b32 v{T0+1}, 2, v{vPOLL}\nv_lshlrev_b32 v{T0}, 2, v{T0}\nv_sub_u32 v{T0}, v{T0+1}, v{T0}")
        e(f"v_mov_b32 v{T0+1}, 0x{f2u(-1e30):x}")
        for r in range(4):
            e(f"v_subrev_u32 v{T0+2}, {r}, v{T0}")
            e(f"v_cmp_gt_u32 vcc, 8, v{T0+2}")
            e(f"v_cndmask_b32 v{BO+r}, v{T0+1}, 0, vcc") if False else e(f"v_cndmask_b32_e64 v{BO+r}, v{T0+1}, 0, vcc")
            e(f"v_cmp_gt_i32 vcc, -8, v{T0+2}")
            e(f"v_cndmask_b32_e64 v{BP+r}, v{T0+1}, 0, vcc")
        e(f"s_cmp_eq_u32 s{sFIRST}, 1\ns_cselect_b64 vcc, -1, 0")
        for r in range(4): e(f"v_cndmask_b32 v{BP0+r}, v{BP+r}, v{T0+1}, vcc")
        for i in range(2): e(f"v_cndmask_b32_e64 v{M4+i}, v{STA+2*i+1}, 1.0, s[{mLT2}:{mLT2+1}]")
        def foldA(a, cs4, st, mul, dst):
            for h in range(2):
                e(f"v_pk_fma_f32 {vr(a+2*h,2)}, {vr(cs4+2*h,2)}, {vr(st,2)}, {vr(a+2*h,2)} op_sel_hi:[1,0,1] neg_lo:[0,1,0] neg_hi:[0,1,0]")
            if mul:
                for h in range(2):
                    e(f"v_pk_mul_f32 {vr(a+2*h,2)}, {vr(a+2*h,2)}, {vr(mul[0],2)} op_sel:[0,{mul[1]}] op_sel_hi:[1,{mul[1]}]")
            for d in dst:
                for h in range(2): e(f"v_cvt_pk_bf16_f32 v{d+h}, v{a+2*h}, v{a+2*h+1}")
        def foldB(a, csr, stb, dst):
            pr, sel = csr & ~1, csr & 1
            for h in range(2):
                e(f"v_pk_fma_f32 {vr(a+2*h,2)}, {vr(stb+2*h,2)}, {vr(pr,2)}, {vr(a+2*h,2)} op_sel:[0,{sel},0] op_sel_hi:[1,{sel},1] neg_lo:[1,0,0] neg_hi:[1,0,0]")
            for h in range(2):
                e(f"v_pk_mul_f32 {vr(a+2*h,2)}, {vr(a+2*h,2)}, {vr(stb+4+2*h,2)}")
            for h in range(2): e(f"v_cvt_pk_bf16_f32 v{dst+h}, v{a+2*h}, v{a+2*h+1}")
        ks = lambda x: KS + 6 * x
        vs = lambda t, x: VS + 6 * (t - 5) + 2 * x
        ONES = 158
        e(f"v_mov_b32 v{ONES}, 0x3f803f80")
        xb = self.alloc(f"xb{l}", XB_OFF, 15360)
        HP = 160
        foldA(HACC, CSAH, STA + 4, (STA + 4, 1), [HP])
        foldB(HACC + 4, CSV + 3, STB + 16, HP + 2)
        for h in range(2): e(f"v_cndmask_b32 v{HP+2+h}, v{HP+2+h}, v{ONES}, s[{mH1}:{mH1+1}]")
        e(f"""v_lshrrev_b32 v{T0}, 1, v{vL16}
        s_cmp_ge_u32 s{sW}, 2
        s_cselect_b32 s{sT}, 256, 0
        s_cselect_b32 s{sT+4}, 512, s{sM1}
        v_xor_b32 v{T0+1}, s{sT}, v{T0}
        s_add_u32 s{sT+4}, s{sT+4}, {XB_OFF}
        v_add_u32 v{T0+1}, s{sT+4}, v{T0+1}
        s_min_u32 s{sT}, s{sW}, 2
        s_lshl_b32 s{sT}, s{sT}, 9
        s_add_u32 s{sT}, s{sT}, {XB_OFF+1536}
        v_add_u32 v{T0+2}, s{sT}, v{T0}
        s_add_u32 s{sT}, s{sM3}, {XB_OFF}
        v_add_u32 v{T0}, s{sT}, v{T0}""")
        e(f"ds_write_b64 v{T0+1}, {vr(HP,2)}")
        e(f"ds_write_b64 v{T0+2}, {vr(HP+2,2)}")
        def kv(i):
            foldA(acc(2, i), CSA + 8, STA + 2 * i, (STA + 2 * i, 1), [ks(1 + i)])
            foldA(acc(3, i), CSA + 12, STA + 2 * i, (STA + 2 * i, 1), [ks(1 + i) + 4])
            foldA(acc(4, i), CSA + 16, STA + 2 * i, (M4, i), [T4P + 2 * i, ks(1 + i) + 2])
            for h in range(2):
                e(f"v_cndmask_b32_e64 v{QS+8*i+2+h}, 0, v{T4P+2*i+h}, s[{mG0}:{mG0+1}]")
                e(f"v_cndmask_b32_e64 v{QS+8*i+4+h}, 0, v{T4P+2*i+h}, s[{mG1}:{mG1+1}]")
            for t in (5, 6, 7): foldB(acc(t, i), CSV + t - 5, STB + 8 * i, vs(t, 1 + i))
            for h in range(2): e(f"v_permlane32_swap_b32 v{T4P+2*i+h}, v{ks(1+i)+2+h}")
            for h in range(2): e(f"v_cndmask_b32 v{vs(7,1+i)+h}, v{vs(7,1+i)+h}, v{ONES}, s[{mC8}:{mC8+1}]")
        kv(1)
        for p in range(3): e(f"ds_write_b64 v{T0}, {vr(ks(2)+2*p,2)} offset:{3072+512*p}")
        for p in range(3): xb.dsw = e(f"ds_write_b64 v{T0}, {vr(vs(5+p,2),2)} offset:{3072+1536+512*p}")
        kv(0)
        e.wait(ds=xb.dsw); self.barrier()
        for p in range(3): e(f"ds_read_b64 {vr(ks(0)+2*p,2)}, v{T0} offset:{512*p}")
        for p in range(3): xb.lastread = e(f"ds_read_b64 {vr(vs(5+p,0),2)}, v{T0} offset:{1536+512*p}")
        xb.done = True
        for i in range(2):
            foldA(acc(0, i), CSA, STA + 2 * i, None, [QS + 8 * i])
            foldA(acc(1, i), CSA + 4, STA + 2 * i, None, [QS + 8 * i + 6])
        SS, PP, OM, OXR, MM = 16, 48, 64, 160, 152
        combos = [(0, 0), (0, 1), (1, 0), (1, 1)]
        for c in (2, 3, 0, 1):
            i, h = combos[c]
            e(f"v_mfma_f32_16x16x32_bf16 {vr(SS+8*c+4,4)}, {vr(ks(1+i)+2*h,4)}, {vr(QS+8*i+4*h,4)}, {vr(BO,4)}")
            e(f"v_mfma_f32_16x16x32_bf16 {vr(SS+8*c,4)}, {vr(ks(i)+2*h,4)}, {vr(QS+8*i+4*h,4)}, {vr(BP if i else BP0,4)}")
        CQS = 156
        e(f"v_cndmask_b32 v{CQS}, v{CQ+1}, v{CQ}, s[{mLT2}:{mLT2+1}]")
        for st in range(4):
            for c in (2, 3, 0, 1):
                s = SS + 8 * c
                if st == 0: e(f"v_max3_f32 v{MM+c}, v{s}, v{s+1}, v{s+2}")
                elif st < 3: e(f"v_max3_f32 v{MM+c}, v{MM+c}, v{s+1+2*st}, v{s+2+2*st}")
                else: e(f"v_max_f32 v{MM+c}, v{MM+c}, v{s+7}")
        e(f"""v_permlane16_swap_b32 v{MM+2}, v{MM+3}
        v_permlane16_swap_b32 v{MM}, v{MM+1}
        v_max_f32 v{MM+2}, v{MM+2}, v{MM+3}
        v_max_f32 v{MM}, v{MM}, v{MM+1}
        v_permlane32_swap_b32 v{MM}, v{MM+2}
        v_max_f32 v{MM}, v{MM}, v{MM+2}
        v_mul_f32_e64 v{MM}, -v{MM}, v{CQS}
        v_mov_b32 v{MM+2}, v{MM}
        v_permlane32_swap_b32 v{MM}, v{MM+2}
        v_mov_b32 v{MM+1}, v{MM}
        v_mov_b32 v{MM+3}, v{MM+2}
        v_permlane16_swap_b32 v{MM}, v{MM+1}
        v_permlane16_swap_b32 v{MM+2}, v{MM+3}""")
        for c in range(4):
            i, h = combos[c]; s = SS + 8 * c
            for k in range(4):
                e(f"v_pk_fma_f32 {vr(s+2*k,2)}, {vr(s+2*k,2)}, {vr(CQ,2)}, {vr(MM+(c&~1),2)} op_sel:[0,{i},{c&1}] op_sel_hi:[1,{i},{c&1}]")
            for k in range(8): e(f"v_exp_f32 v{s+k}, v{s+k}")
            for k in range(4): e(f"v_cvt_pk_bf16_f32 v{PP+4*c+k}, v{s+2*k}, v{s+2*k+1}")
            e(f"v_mfma_f32_16x16x32_bf16 {vr(OXR+4*c,4)}, {vr(vs(7,i),4)}, {vr(PP+4*c,4)}, 0")
            e(f"v_mfma_f32_16x16x32_bf16 {vr(OM+4*c,4)}, {vr(vs(5+h,i),4)}, {vr(PP+4*c,4)}, 0")
        INV, OUTM, OUTX = 100, 104, 112
        e(f"s_add_u32 s{sT}, s{sOM}, {L.OA[l]}\ns_add_u32 s{sT+4}, s{sOX}, {L.OA[l]}")
        e(f"v_add_u32 v{OUTX+8}, 20480, v{vOX}")
        for i in range(2):
            for h in range(2):
                c = 2 * i + h
                e(f"v_mov_b32 v{INV+c}, v{OXR+4*c}")
            for h in range(2): e(f"v_permlane32_swap_b32 v{OXR+4*(2*i+h)}, v{INV+2*i+h}")
            for h in range(2): e(f"v_rcp_f32 v{INV+2*i+h}, v{INV+2*i+h}")
            for r in range(4): e(f"v_cndmask_b32 v{OXR+8*i+r}, v{OXR+8*i+4+r}, v{OXR+8*i+r}, s[{mG0}:{mG0+1}]")
            for h in range(2):
                c = 2 * i + h
                for k in range(2): e(f"v_pk_mul_f32 {vr(OM+4*c+2*k,2)}, {vr(OM+4*c+2*k,2)}, {vr(INV+2*i,2)} op_sel:[0,{h}] op_sel_hi:[1,{h}]")
                for k in range(2): e(f"v_cvt_pk_bf16_f32 v{OUTM+4*i+2*h+k}, v{OM+4*c+2*k}, v{OM+4*c+2*k+1}")
            e(f"buffer_store_dwordx4 {vr(OUTM+4*i,4)}, v{vL16B if i else vL16}, {WS}, s{sT} offen")
            e(f"v_cndmask_b32 v{OUTX+4+2*i}, v{INV+2*i+1}, v{INV+2*i}, s[{mG0}:{mG0+1}]")
            for k in range(2): e(f"v_pk_mul_f32 {vr(OXR+8*i+2*k,2)}, {vr(OXR+8*i+2*k,2)}, {vr(OUTX+4+2*i,2)} op_sel_hi:[1,0]")
            for k in range(2): e(f"v_cvt_pk_bf16_f32 v{OUTX+2*i+k}, v{OXR+8*i+2*k}, v{OXR+8*i+2*k+1}")
        e("s_mov_b32 exec_hi, 0")
        e(f"buffer_store_dwordx2 {vr(OUTX,2)}, v{vOX}, {WS}, s{sT+4} offen")
        e(f"buffer_store_dwordx2 {vr(OUTX+2,2)}, v{OUTX+8}, {WS}, s{sT+4} offen")
        e("s_mov_b32 exec_hi, -1")
        e(f"v_add_u32 v16, s{sM1}, v{vL16}\nv_add_u32 v17, s{sM1}, v{vLDS1}")
        for b in range(25): self.rd(N[f"w2_{l}_{b}"], 128 + 4 * b, 0, 4, (16, 17, 17), True)
        self.stamp(f"p1.{l}.done")
        if l == 0:
            e.wait_all()
            self.poll(sFL, 15 * 2048, vPOLL, 18, acquire=False)
            e(f"v_readfirstlane_b32 s{sT}, v18")
            e(f"v_cmp_ne_u32 vcc, s{sT}, v18")
            e("s_cmp_eq_u64 vcc, 0")
            e(f"s_cselect_b32 s{sLOC}, 1, 0")
            if self.cfg.get("force_slow"): e(f"s_mov_b32 s{sLOC}, 0")
        self.signal(4 * l)

    def pk(self, l, four):
        e = self.e; N = self.named
        NK = 12 if four else 5
        tag = f"p{4 if four else 2}.{l}"
        ACC = (16, 36); AR = 56
        NA = 18 if not four else 24
        if not four: NA = 18
        PRT = 152 if four else 56
        abase = (L.HA if four else L.OA)[l]; sA = sA4 if four else sA2
        wf = (lambda ks, t: ar(4 * (ks * 5 + t), 4)) if four else (lambda ks, t: vr(128 + 4 * (ks * 5 + t), 4))
        nfr = 4 * NK
        def aload(n):
            def f():
                r, imm = self.soff("a", sT + 3, sA + n // NK, abase + (n % NK) * 1024)
                e(f"buffer_load_dwordx4 {vr(AR+4*(n%NA),4)}, v{vL16}, {WS}, s{r} offen offset:{imm} sc1")
            return f
        for n in range(NA): aload(n)()
        VW, VR = 228, 231
        for t in range(3):
            e(f"s_add_u32 s{sT}, s{sW}, {1+t}\ns_and_b32 s{sT}, s{sT}, 3\ns_mul_i32 s{sT}, s{sT}, 15360\ns_add_u32 s{sT}, s{sT}, {PART_OFF + t*5120}")
            e(f"v_add_u32 v{VW+t}, s{sT}, v{vL16}")
        e(f"s_mul_i32 s{sT}, s{sW}, 15360\ns_add_u32 s{sT}, s{sT}, {PART_OFF}\nv_add_u32 v{VR}, s{sT}, v{vL16}")
        po = self.alloc(f"part{tag}", PART_OFF, 61440)
        mf = []; pre = {}; post = {}
        P = lambda d, i, f: d.setdefault(i, []).append(f)
        for t in range(4):
            for ks in range(NK):
                n = t * NK + ks
                for tp in range(5):
                    a = ACC[t & 1] + 4 * tp
                    C = vr(a, 4) if (ks or t == 3) else "0"
                    mf.append(f"v_mfma_f32_16x16x32_bf16 {vr(a,4)}, {wf(ks,tp)}, {vr(AR+4*(n%NA),4)}, {C}")
                if n + NA < nfr: P(post, 5 * n + 5, aload(n + NA))
        R = 5 * NK
        def pw(t, tp):
            def f(): po.dsw = e(f"ds_write_b128 v{VW+t}, {vr(ACC[t&1]+4*tp,4)} offset:{1024*tp}")
            return f
        for t in range(3):
            for tp in range(5): P(post, R * (t + 1) + 3 + 2 * tp, pw(t, tp))
        ux = []
        for k in range(10):
            ux.append(f"v_lshlrev_b32 v{ACC[1]+2*k}, 16, v{vXP+k}")
            ux.append(f"v_and_b32 v{ACC[1]+2*k+1}, 0xffff0000, v{vXP+k}")
        for k, s in enumerate(ux): P(post, 2 * R + 12 + k // 2, s)
        def bar():
            e.wait(ds=po.dsw); self.barrier()
        P(post, 3 * R + 12, bar)
        if not four: prt = lambda s, tp: (AR + 8 + 20 * s + 4 * tp) if s < 2 else ACC[0] + 4 * tp
        else: prt = lambda s, tp: PRT + 20 * s + 4 * tp
        def pr(s, tp):
            def f():
                t = e(f"ds_read_b128 {vr(prt(s,tp),4)}, v{VR} offset:{5120*s+1024*tp}"); po.lastread = t
                assert po.landed is not None
            return f
        items = [pr(s, tp) for tp in range(5) for s in range(3)]
        for k, f in enumerate(items): P(post, 3 * R + 12 + (k // 2 if not four else k), f)
        adds = []
        for tp in range(5):
            for h in range(2):
                adds.append(f"v_pk_add_f32 {vr(prt(0,tp)+2*h,2)}, {vr(prt(0,tp)+2*h,2)}, {vr(prt(1,tp)+2*h,2)}")
                adds.append(f"v_pk_add_f32 {vr(prt(0,tp)+2*h,2)}, {vr(prt(0,tp)+2*h,2)}, {vr(prt(2,tp)+2*h,2)}")
        if four:
            for k, s in enumerate(adds): P(post, 3 * R + 34 + k, s)
            adds = []
        extra = list(self.cfg.get((tag[:2] + "extra", l), lambda s: [])(self))
        k = 3
        while extra:
            assert k < 3 * R, "too many extras"
            P(post, k, extra.pop(0)); k += self.cfg.get("pkstep", 5)
        self.stamp(tag + ".loop")
        self.loop(mf, pre, post)
        po.done = True
        self.stamp(tag + ".epi")
        for s in adds: e(s)
        A1 = ACC[1]
        for tp in range(5):
            for h in range(2): e(f"v_pk_add_f32 {vr(A1+4*tp+2*h,2)}, {vr(A1+4*tp+2*h,2)}, {vr(prt(0,tp)+2*h,2)}")
            for h in range(2): e(f"v_cvt_pk_bf16_f32 v{vXP+2*tp+h}, v{A1+4*tp+2*h}, v{A1+4*tp+2*h+1}")
        if four and l == 1:
            e(f"v_lshrrev_b32 v16, 8, v{vL16}\nv_lshrrev_b32 v17, 2, v{vPOLL}\ns_movk_i32 s{sT}, 2560\nv_lshlrev_b32 v16, 3, v16\nv_mad_u32_u24 v16, v17, s{sT}, v16")
            for tp in range(4): e(f"buffer_store_dwordx2 {vr(vXP+2*tp,2)}, v16, {OUT}, s{sOA} offen offset:{32*tp}")
            e(f"buffer_store_dwordx2 {vr(vXP+8,2)}, v16, {OUT}, s{sOB} offen")
            return
        xi = 2 * l + (2 if four else 1)
        e(f"s_add_u32 s{sT}, s{sXA}, {L.XA[xi]}\ns_add_u32 s{sT+4}, s{sXB}, {L.XA[xi]}\ns_add_u32 s{sT+5}, s{sSTO}, {L.ST[xi]}")
        e(f"buffer_store_dwordx4 {vr(vXP,4)}, v{vL16}, {WS}, s{sT} offen")
        e(f"buffer_store_dwordx4 {vr(vXP+4,4)}, v{vL16}, {WS}, s{sT} offen offset:1024")
        e(f"buffer_store_dwordx2 {vr(vXP+8,2)}, v{vL16}, {WS}, s{sT+4} offen")
        e("v_mov_b32 v20, 0x3f803f80")
        for k in range(10):
            c0 = f"v{16+2*(k&1)}" if k >= 2 else "0"; c1 = f"v{17+2*(k&1)}" if k >= 2 else "0"
            e(f"v_dot2_f32_bf16 v{16+2*(k&1)}, v{vXP+k}, v20, {c0}")
            e(f"v_dot2_f32_bf16 v{17+2*(k&1)}, v{vXP+k}, v{vXP+k}, {c1}")
        e("""v_pk_add_f32 v[16:17], v[16:17], v[18:19]
        v_permlane16_swap_b32 v16, v17
        v_add_f32 v16, v16, v17
        v_mov_b32 v17, v16
        v_permlane32_swap_b32 v16, v17
        v_add_f32 v16, v16, v17
        v_mov_b32 v17, v16
        v_permlane16_swap_b32 v16, v17
        s_mov_b32 exec_lo, 0xffff
        s_mov_b32 exec_hi, 0""")
        e(f"buffer_store_dwordx2 v[16:17], v{vL16}, {WS}, s{sT+5} offen")
        e("s_mov_b64 exec, -1")
        self.stamp(tag + ".done")
        self.signal(4 * l + (3 if four else 1))
        if four:
            lab = e.label("HW")
            e(f"s_cmp_eq_u32 s{sHW}, 0\ns_cbranch_scc1 {lab}")
            d = f"""s_mul_i32 s{sT+6}, s{sG}, {7*20480}
            s_add_u32 s{sT+6}, s{sT+6}, {7*20480}
            s_sub_u32 s{sT}, s{sXA}, s{sT+6}
            s_add_u32 s{sT}, s{sT}, {L.HX}
            s_sub_u32 s{sT+4}, s{sXB}, s{sT+6}
            s_add_u32 s{sT+4}, s{sT+4}, {L.HX}
            buffer_store_dwordx4 {vr(vXP,4)}, v{vL16}, {WS}, s{sT} offen sc1
            buffer_store_dwordx4 {vr(vXP+4,4)}, v{vL16}, {WS}, s{sT} offen offset:1024 sc1
            buffer_store_dwordx2 {vr(vXP+8,2)}, v{vL16}, {WS}, s{sT+4} offen sc1
            s_mul_i32 s{sT+6}, s{sG}, {7*1024}
            s_add_u32 s{sT+6}, s{sT+6}, {7*1024}
            s_sub_u32 s{sT+5}, s{sSTO}, s{sT+6}
            s_add_u32 s{sT+5}, s{sT+5}, {L.HST}
            s_mov_b32 exec_lo, 0xffff
            s_mov_b32 exec_hi, 0
            buffer_store_dwordx2 v[16:17], v{vL16}, {WS}, s{sT+5} offen sc1
            s_waitcnt vmcnt(0)
            s_lshl_b32 s{sT}, s{sM}, 2
            s_add_u32 s{sT}, s{sT}, s{sFL}
            s_add_u32 s{sT}, s{sT}, {8*2048}
            s_mov_b64 exec, 1
            buffer_store_dword v{vONE}, off, {WS}, s{sT} sc1
            s_mov_b64 exec, -1"""
            for ln in d.split("\n"): e.raw(ln.strip())
            e.place(lab)

    def p3(self, l):
        e = self.e; N = self.named
        ACC, AR, DA, BR, NB, AH = 16, 112, 6, 160, 8, 6
        STQ, MU, C3, SG = 192, 200, 202, 203
        xi = 2 * l + 1
        def aload(k, ee):
            def f():
                r, imm = self.soff("a", sT + 3, sAX, L.XA[xi] + k * 1024 + ee * 512)
                e(f"buffer_load_dwordx4 {vr(AR+(k%DA)*8+4*ee,4)}, v{vA3}, {WS}, s{r} offen offset:{imm} sc1")
            return f
        e(f"s_add_u32 s{sT}, s{sSTI}, {L.ST[xi]}")
        for k in range(DA):
            aload(k, 0)(); aload(k, 1)()
            if k == 0:
                e(f"buffer_load_dwordx4 {vr(STQ,4)}, v{vST3}, {WS}, s{sT} offen sc1")
                e(f"buffer_load_dwordx4 {vr(STQ+4,4)}, v{vST3}, {WS}, s{sT} offen offset:256 sc1")
        q = []
        for c in range(20):
            if f"w3_{l}_{c}" not in N: q.append((c, self.w3_chunk(l, c)))
        mf = []; pre = {}; post = {}; tok = {}
        P = lambda d, i, f: d.setdefault(i, []).append(f)
        for k in range(20):
            for j in range(12):
                n = 12 * k + j; a = ACC + 16 * (j % 6)
                mf.append(f"v_mfma_f32_32x32x16_bf16 {vr(a,16)}, {vr(BR+4*(n%NB),4)}, {vr(AR+(k%DA)*8+4*(j//6),4)}, {vr(a,16) if n >= 6 else 0}")
        def mkread(n):
            def f(): tok[n] = self.rd(N[f"w3_{l}_{n//12}"], BR + 4 * (n % NB), (n % 12) * 1024, 4, last=(n % 12 == 11))
            return f
        def mkbar(k):
            def f():
                e.wait(vm=max(N[f"w3_{l}_{c}"].vm for c in (k, k + 1))); self.barrier()
            return f
        for n in range(AH, 240):
            if n % 24 == 0: P(post, n - AH, mkbar(n // 12))
            P(post, n - AH, mkread(n))
        for n in range(0, 240, 2): P(pre, n, (lambda n=n: e.wait(ds=tok[n + 1])))
        extra = list(self.cfg.get(("p3extra", l), lambda s: [])(self))
        for k in range(20):
            b = 12 * k
            if k >= 1 and k + DA - 1 < 20:
                P(post, b + 0, aload(k + DA - 1, 0)); P(post, b + 2, aload(k + DA - 1, 1))
            slots = [b + 4, b + 6, b + 8, b + 10, b + 1, b + 3, b + 5, b + 7, b + 9, b + 11] if k + DA - 1 < 20 else [b + i for i in (0, 2, 4, 6, 8, 10, 1, 3, 5, 7)]
            items = []
            if q:
                c = q[0][0]
                prev = self.W3SLOT[c] if c >= 13 else None
                if prev is None or k >= ((prev + 3) // 2) * 2: items += q.pop(0)[1]
            nmax = self.cfg.get("p3rate", 4)
            while len(items) < nmax and extra and extra[0][0] <= k: items.append(extra.pop(0)[1])
            for s, f in sorted(zip(slots, range(len(items)))): pass
            for s, f in zip(sorted(slots[:len(items)]), items): P(post, s, f)
        assert not q and not extra, (len(q), len(extra))
        e.wait(vm=max(N[f"w3_{l}_{c}"].vm for c in (0, 1)), ds=e.ds_seq)
        self.barrier()
        for n in range(AH): mkread(n)()
        e(f"v_pk_add_f32 {vr(STQ,2)}, {vr(STQ,2)}, {vr(STQ+2,2)}")
        e(f"v_pk_add_f32 {vr(STQ+4,2)}, {vr(STQ+4,2)}, {vr(STQ+6,2)}")
        e(f"v_pk_add_f32 {vr(STQ,2)}, {vr(STQ,2)}, {vr(STQ+4,2)}")
        e(f"v_mov_b32 v{STQ+2}, v{STQ}\nv_mov_b32 v{STQ+3}, v{STQ+1}")
        e(f"v_permlane32_swap_b32 v{STQ}, v{STQ+2}\nv_permlane32_swap_b32 v{STQ+1}, v{STQ+3}")
        e(f"v_pk_add_f32 {vr(STQ,2)}, {vr(STQ,2)}, {vr(STQ+2,2)}")
        self.stats_fin(STQ, MU)
        e(f"v_mul_f32 v{C3}, 0x{f2u(-LOG2E):x}, v{MU+1}")
        e(f"v_mul_f32 v{SG}, v{STQ+1}, v{MU+1}")
        e(f"v_lshrrev_b32 v{STQ}, 9, v{vL16}\nv_lshlrev_b32 v{STQ}, 4, v{STQ}\nv_add_u32 v{STQ}, {CS_OFF+512}, v{STQ}")
        self.stamp(f"p3.{l}.loop")
        self.loop(mf, pre, post)
        self.stamp(f"p3.{l}.epi")
        e(f"s_add_u32 s{sT}, s{sH}, {L.HA[l]}")
        CSR = 112
        def csload(T):
            for m_ in range(2):
                for i in range(4): e(f"ds_read_b128 {vr(CSR+32*(T&1)+16*m_+4*i,4)}, v{STQ} offset:{(2*T+m_)*128+32*i}")
        csload(0); csload(1)
        OUTR = 204
        for T in range(3):
            G, U, c = ACC + 32 * T, ACC + 32 * T + 16, CSR + 32 * (T & 1)
            for k in range(8):
                e(f"v_pk_fma_f32 {vr(G+2*k,2)}, {vr(c+2*k,2)}, {vr(MU,2)}, {vr(G+2*k,2)} op_sel_hi:[1,0,1] neg_lo:[0,1,0] neg_hi:[0,1,0]")
            for k in range(8):
                e(f"v_pk_mul_f32 {vr(G+2*k,2)}, {vr(G+2*k,2)}, {vr(C3,2)} op_sel_hi:[1,0]")
            for k in range(8):
                e(f"v_exp_f32 v{G+2*k}, v{G+2*k}\nv_exp_f32 v{G+2*k+1}, v{G+2*k+1}")
                e(f"v_pk_fma_f32 {vr(U+2*k,2)}, {vr(c+16+2*k,2)}, {vr(MU,2)}, {vr(U+2*k,2)} op_sel_hi:[1,0,1] neg_lo:[0,1,0] neg_hi:[0,1,0]")
            if T == 0: csload(2)
            for k in range(8):
                e(f"v_pk_fma_f32 {vr(G+2*k,2)}, {vr(G+2*k,2)}, {vr(C3,2)}, {vr(C3,2)} op_sel:[0,1,1] op_sel_hi:[1,1,1]")
            for ip in range(2):
                o = OUTR + 4 * ((2 * T + ip) % 4)
                for k in range(4 * ip, 4 * ip + 4):
                    e(f"v_rcp_f32 v{G+2*k}, v{G+2*k}\nv_rcp_f32 v{G+2*k+1}, v{G+2*k+1}")
                for k in range(4 * ip, 4 * ip + 4):
                    e(f"v_pk_mul_f32 {vr(U+2*k,2)}, {vr(U+2*k,2)}, {vr(G+2*k,2)}")
                for k in range(4 * ip, 4 * ip + 4):
                    e(f"v_cvt_pk_bf16_f32 v{o+k-4*ip}, v{U+2*k}, v{U+2*k+1}")
                e(f"buffer_store_dwordx4 {vr(o,4)}, v{vHS}, {WS}, s{sT} offen offset:{T*1024+ip*512}")
        self.stamp(f"p3.{l}.done")
        self.signal(4 * l + 2)

    def build(self):
        e = self.e
        self.prologue()
        for l in range(2):
            if l == 1:
                self.poll(sFL, 3 * 2048, vPOLL, 18)
                e(f"v_and_b32 v19, 28, v{vPOLL}\nv_add_u32 v19, 32, v19")
                self.poll(sFLP, 0, 19, 18, acquire=False)
            self.p1(l)
            if self.stop == f"p1.{l}": break
            self.poll(sFL, (4 * l) * 2048, vPOLL, 18)
            self.pk(l, False)
            if self.stop == f"p2.{l}": break
            self.poll(sFL, (4 * l + 1) * 2048, vPOLL, 18)
            self.p3(l)
            if self.stop == f"p3.{l}": break
            self.poll(sFL, (4 * l + 2) * 2048, vPOLL, 18)
            self.pk(l, True)
            if self.stop == f"p4.{l}": break
        self.finish()
        return e

def flat(ll): return [x for l in ll for x in l]
def default_cfg():
    cfg = {}
    for l in range(2):
        cfg[("p1post", l)] = lambda s, l=l: flat(s.w3_chunk(l, c) for c in (0, 1))
        cfg[("p2extra", l)] = lambda s, l=l: flat(s.w3_chunk(l, c) for c in range(2, 8))
    cfg["pkstep"] = 4
    def p3x(s):
        out = []
        w4 = [s.w4_load(n)[0] for n in range(60)]
        w1 = []
        for c in range(12):
            last = max({0: 13, 1: 14, 2: 15}.get(sl, sl) for sl in ((8 * c) // 12, (8 * c + 7) // 12))
            for f in s.w1_chunk(1, c): w1.append((((last + 3) // 2) * 2, f))
        w1.sort(key=lambda x: x[0])
        ev = [(0, f) for f in w4]
        return ev + w1
    cfg[("p3extra", 0)] = p3x
    cfg["p3rate"] = 6
    return cfg

if __name__ == "__main__":
    import sys
    from asmlib import wrap, NAME
    from k0 import gen_k0, RS
    import json
    def make(path, stamps=False, stop=None, **over):
        cfg = default_cfg(); cfg.update(over)
        m = Main(stamps=stamps, stop=stop, cfg=cfg); e = m.build()
        k0 = gen_k0()
        txt = wrap([dict(name="prep_kernel", body=k0.text(), grid=256, block=256, lds=32*RS, vgpr=176, accum=176),
                    dict(name="main_kernel", body=e.text(), grid=256, block=256, lds=160*1024, vgpr=512, accum=256)])
        open(path, "w").write(txt)
        print(path, e.stat, len(txt), "bytes")
        json.dump(m.stamp_names, open(path + ".stamps", "w"))
        return e
    e = make("full.s")
    print(e.log_nops)
    make("full_slow.s", force_slow=True)
```

```python
from emit import *
import layout as L
import struct

def f2u(x): return struct.unpack("<I", struct.pack("<f", x))[0]
LOG2E = 1.4426950408889634
KB = 1024
CS_OFF = 156 * KB
STB_OFF = CS_OFF + 1280
HALO_OFF = 136 * KB
XB_OFF = 136 * KB
W2_OFF = 24 * KB
PART_OFF = 96 * KB
WS = "s[4:7]"; OUT = "s[8:11]"
sW, sG, sM, sLOC = 12, 13, 14, 15
sAX, sHAL0, sW1, sW3, sW2, sW4 = 16, 17, 18, 19, 20, 21
sA2, sA4 = 22, 26
sXA, sXB, sSTO, sSTI, sSTH0, sHAL1, sSTH1, sOM, sOX, sH, sFL, sFLP = 30, 31, 32, 33, 34, 35, 36, 37, 38, 39, 40, 41
sM2, sM3, sM1, sBUD, sOA, sOB = 42, 43, 44, 45, 46, 47
sT = 48
mG0, mG1, mLT2, mC8, mH1, mODD = 56, 58, 60, 62, 64, 66
sFIRST, sHW = 68, 69
sSTAMP = 70
vL16, vL16B, vA3, vLDS1, vLDS2, vHK = 0, 1, 2, 4, 5, 6
vPOLL, vONE, vOX, vHS, vST3 = 9, 10, 11, 12, 13
vXP = 246

class Obj:
    def __init__(s, name, off, size, private=False):
        s.name, s.off, s.size, s.private = name, off, size, private
        s.vm = 0; s.dsw = 0; s.landed = None; s.lastread = 0; s.done = False; s.released = None

class Main:
    def __init__(self, stamps=False, stop=None, cfg=None):
        self.e = Em(); self.objs = []; self.stamps = stamps; self.nstamp = 0; self.stop = stop
        self.stamp_names = []
        self.cfg = cfg or {}
        self.streams = {}
    def alloc(self, name, off, size, private=False):
        for o in self.objs:
            if o.off < off + size and off < o.off + o.size:
                assert o.released is not None, f"LDS WAR: {name} over live {o.name}"
        self.objs = [o for o in self.objs if not (o.off < off + size and off < o.off + o.size and o.off >= off and o.off + o.size <= off + size)]
        o = Obj(name, off, size, private); self.objs.append(o); return o
    def barrier(self):
        e = self.e; e.barrier()
        for o in self.objs:
            if o.landed is None and o.vm <= e.vm_done and o.dsw <= e.ds_done: o.landed = e.barriers
            if o.done and o.released is None and o.lastread <= e.ds_done: o.released = e.barriers
    def lds(self, off, bases=(vL16, vLDS1, vLDS2)):
        return f"v{bases[off >> 16]} offset:{off & 0xffff}"
    def rd(self, o, dst, off, n=4, bases=(vL16, vLDS1, vLDS2), last=False):
        e = self.e
        if o.private: e.wait(vm=o.vm, ds=o.dsw if o.dsw else None)
        else: assert o.landed is not None, f"LDS RAW: {o.name} not landed"
        op = {4: "ds_read_b128", 2: "ds_read_b64", 1: "ds_read_b32"}[n]
        t = e(f"{op} {vr(dst, n)}, {self.lds(o.off + off, bases)}")
        o.lastread = t
        if last: o.done = True
        return t
    def soff(self, key, reg, base, const):
        cur = self.streams.get(key)
        if cur and cur[0] == base and 0 <= const - cur[1] <= 4095 - 15:
            return reg, const - cur[1]
        self.e(f"s_add_u32 s{reg}, s{base}, {const}")
        self.streams[key] = (base, const)
        return reg, 0
    def stamp(self, name):
        if not self.stamps: return
        r = sSTAMP + 2 * (self.nstamp % 4)
        if self.nstamp >= 4: self.e(f"v_writelane_b32 v15, s{r}, {self.nstamp-4}")
        self.e(f"s_memtime s[{r}:{r+1}]"); self.nstamp += 1; self.stamp_names.append(name)
    def dma_chunk(self, name, ldsoff, nblk, mreg, base, gconst, key="w", mod=""):
        st = {}
        def mk(p):
            def f():
                e = self.e
                if p == 0:
                    st["o"] = self.alloc(name, ldsoff, 4 * nblk * KB); self.named[name] = st["o"]
                if self.m0_owner != name:
                    e(f"s_add_u32 m0, s{mreg}, {ldsoff}")
                    e(f"s_add_u32 s{sT+1}, s{base}, {gconst}")
                self.m0_owner = name
                st["o"].vm = e(f"buffer_load_dwordx4 v{vL16}, {WS}, s{sT+1} offen offset:{p*1024}{mod} lds")
            return f
        return [mk(p) for p in range(nblk)]
    def w1_chunk(self, l, c):
        slot = c if c < 17 else c - 17
        return self.dma_chunk(f"w1_{l}_{c}", slot * 8 * KB, 2, sM2, sW1, c * 8192)
    W3SLOT = {**{c: c for c in range(13)}, 13: 0, 14: 1, 15: 2, 16: 8, 17: 9, 18: 10, 19: 11}
    def w3_chunk(self, l, c):
        return self.dma_chunk(f"w3_{l}_{c}", self.W3SLOT[c] * 12 * KB, 3, sM3, sW3, c * 12288)
    def w2_block(self, l, b):
        it = self.dma_chunk(f"w2_{l}_{b}", W2_OFF + b * 4 * KB, 1, sM1, sW2, b * 1024)
        def f():
            it[0](); self.named[f"w2_{l}_{b}"].private = True
        return [f]
    def halo_block(self, l, i):
        return self.dma_chunk(f"ha_{l}_{i}", HALO_OFF + i * 4 * KB, 1, sM1, sHAL0 if l == 0 else sHAL1, i * 4096, mod=" sc1")
    def w4_load(self, n):
        def f():
            r, imm = self.soff("w4", sT + 2, sW4, n * 1024)
            self.e(f"buffer_load_dwordx4 {ar(4*n,4)}, v{vL16}, {WS}, s{r} offen offset:{imm}")
        return [f]
    def loop(self, mf, pre, post):
        for i, m in enumerate(mf):
            for f in pre.get(i, []): f() if callable(f) else self.e(f)
            self.e(m)
            for f in post.get(i, []): f() if callable(f) else self.e(f)
    def signal(self, slot):
        e = self.e
        e.wait_all(vm=True, ds=True)
        self.barrier()
        lab = e.label("SG"); lab2 = e.label("SG")
        e(f"s_cmp_lg_u32 s{sW}, 0\ns_cbranch_scc1 {lab}")
        e(f"s_lshl_b32 s{sT}, s{sM}, 2\ns_add_u32 s{sT}, s{sT}, s{sFL}\ns_add_u32 s{sT}, s{sT}, {slot*2048}")
        e("s_mov_b64 exec, 1")
        e(f"s_cmp_eq_u32 s{sLOC}, 0\ns_cbranch_scc1 {lab2}")
        e.raw(f"buffer_store_dword v{vONE}, off, {WS}, s{sT}")
        e("s_mov_b64 exec, -1")
        e(f"s_branch {lab}")
        e.place(lab2)
        e.raw("buffer_wbl2 sc1\ns_waitcnt vmcnt(0)")
        e.raw(f"buffer_store_dword v{vONE}, off, {WS}, s{sT} sc1")
        e("s_mov_b64 exec, -1")
        e.place(lab)
        self.streams = {}
    def poll(self, sreg, const, voff, tmp, acquire=True):
        e = self.e
        assert e.vm_done == e.vm_seq
        top = e.label("PL"); done = e.label("PL")
        e(f"s_add_u32 s{sT}, s{sreg}, {const}")
        e.place(top)
        e.raw(f"buffer_load_dword v{tmp}, v{voff}, {WS}, s{sT} offen sc1")
        e.raw("s_waitcnt vmcnt(0)")
        e.raw(f"v_cmp_eq_u32 vcc, 0, v{tmp}")
        e.raw("s_nop 1")
        e.raw("s_cmp_eq_u64 vcc, 0")
        e.raw(f"s_cbranch_scc1 {done}")
        e.raw(f"s_sub_u32 s{sBUD}, s{sBUD}, 1")
        e.raw(f"s_cbranch_scc0 {top}")
        e.raw(f"s_mov_b32 s{sBUD}, 0")
        e.place(done)
        if acquire:
            lab = e.label("PL")
            e.raw(f"s_cmp_lg_u32 s{sLOC}, 0\ns_cbranch_scc1 {lab}\nbuffer_inv sc1\ns_waitcnt vmcnt(0)")
            e.place(lab)
        e.flush_hazards()
    def finish(self):
        e = self.e
        if self.stamps:
            self.stamp("end")
            e("s_memrealtime s[82:83]")
            e.force_wait("s_waitcnt vmcnt(0) lgkmcnt(0)", vm=True, ds=True)
            e("s_sub_u32 s82, s82, s80\nv_mov_b32 v22, s82\nv_mov_b32 v23, s80")
            e(f"s_lshl_b32 s{sT}, s2, 2\ns_add_u32 s{sT}, s{sT}, s{sW}\ns_lshl_b32 s{sT}, s{sT}, 7\ns_add_u32 s{sT}, s{sT}, {L.DBG}")
            for i in range(self.nstamp - 4, self.nstamp): e(f"v_writelane_b32 v15, s{sSTAMP+2*(i%4)}, {i}")
            e(f"v_lshrrev_b32 v20, 2, v{vL16}")
            e("s_mov_b32 exec_hi, 0")
            e(f"buffer_store_dword v15, v20, {WS}, s{sT} offen")
            e(f"s_lshl_b32 s{sT}, s2, 3\ns_add_u32 s{sT}, s{sT}, {L.DBG+0x40000}\ns_mov_b64 exec, 1")
            e(f"buffer_store_dwordx2 v[22:23], off, {WS}, s{sT}")
        e("s_endpgm")

    def stats16(self, q, dst):
        e = self.e
        e(f"v_pk_add_f32 {vr(q,2)}, {vr(q,2)}, {vr(q+2,2)}")
        e(f"v_permlane16_swap_b32 v{q}, v{q+1}")
        e(f"v_add_f32 v{q}, v{q}, v{q+1}")
        e(f"v_mov_b32 v{q+1}, v{q}")
        e(f"v_permlane32_swap_b32 v{q}, v{q+1}")
        e(f"v_add_f32 v{q}, v{q}, v{q+1}")
        e(f"v_mov_b32 v{q+1}, v{q}")
        e(f"v_permlane16_swap_b32 v{q}, v{q+1}")
        self.stats_fin(q, dst)
    def stats_fin(self, q, dst):
        e = self.e
        e(f"v_mul_f32 v{dst}, 0x{f2u(1/640):x}, v{q}")
        e(f"v_mul_f32 v{q+1}, 0x{f2u(1/640):x}, v{q+1}")
        e(f"v_fma_f32 v{q+1}, -v{dst}, v{dst}, v{q+1}")
        e(f"v_max_f32 v{q+1}, 0, v{q+1}")
        e(f"v_add_f32 v{q+1}, 0x{f2u(1e-5):x}, v{q+1}")
        e(f"v_rsq_f32 v{dst+1}, v{q+1}")

    def prologue(self):
        e = self.e
        self.named = {}; self.m0_owner = None; self.t1_owner = None
        e("s_cmp_lt_u32 s2, 256\ns_cbranch_scc1 M_go\ns_endpgm")
        e.place("M_go")
        e("s_load_dwordx2 s[4:5], s[0:1], 72")
        e("s_load_dwordx2 s[8:9], s[0:1], 56")
        self.stamp("start")
        if self.stamps: e("s_memrealtime s[80:81]")
        e(f"""v_lshrrev_b32 v1, 6, v0
        v_readfirstlane_b32 s{sW}, v1
        v_and_b32 v3, 63, v0
        v_lshlrev_b32 v{vL16}, 4, v3
        v_add_u32 v{vL16B}, 20480, v{vL16}
        v_add_u32 v{vLDS1}, 0x10000, v{vL16}
        v_add_u32 v{vLDS2}, 0x20000, v{vL16}
        s_and_b32 s48, s2, 7
        s_lshr_b32 s49, s2, 3
        s_lshr_b32 s50, s49, 4
        s_lshl_b32 s48, s48, 1
        s_add_u32 s{sG}, s48, s50
        s_and_b32 s{sM}, s49, 15
        s_mov_b32 s6, {L.WS_USED}
        s_mov_b32 s7, 0x20000
        s_mov_b32 s10, 2621440
        s_mov_b32 s11, 0x20000
        s_mov_b32 s{sBUD}, 0x20000
        s_lshl_b32 s48, s{sG}, 3
        s_lshl_b32 s49, s{sW}, 1
        s_add_u32 s49, s49, s48
        s_mul_i32 s{sAX}, s49, 20480
        s_lshl_b32 s{sSTI}, s49, 10
        s_mul_i32 s{sH}, s49, 49152
        s_mul_i32 s50, s{sM}, 3072
        s_add_u32 s{sH}, s{sH}, s50
        s_lshl_b32 s50, s{sM}, 10
        s_add_u32 s{sOM}, s{sAX}, s50
        s_lshr_b32 s50, s{sM}, 2
        s_add_u32 s50, s50, 16
        s_lshl_b32 s50, s50, 10
        s_and_b32 s51, s{sM}, 3
        s_lshl_b32 s51, s51, 8
        s_add_u32 s50, s50, s51
        s_add_u32 s{sOX}, s{sAX}, s50
        s_lshl_b32 s{sM1}, s{sW}, 10
        s_lshl_b32 s{sM2}, s{sW}, 11
        s_mul_i32 s{sM3}, s{sW}, 3072
        s_mul_i32 s{sW1}, s{sM}, 163840
        s_add_u32 s{sW1}, s{sW1}, s{sM2}
        s_add_u32 s{sW1}, s{sW1}, {L.W1}
        s_mul_i32 s{sW3}, s{sM}, 245760
        s_add_u32 s{sW3}, s{sW3}, s{sM3}
        s_add_u32 s{sW3}, s{sW3}, {L.W3}
        s_and_b32 s52, s{sM}, 7
        s_lshr_b32 s53, s{sM}, 3
        s_mul_i32 s{sW2}, s52, 102400
        s_mul_i32 s50, s{sW}, 25600
        s_add_u32 s{sW2}, s{sW2}, s50
        s_add_u32 s{sW2}, s{sW2}, {L.W2}
        s_mul_i32 s{sW4}, s52, 245760
        s_mul_i32 s50, s{sW}, 61440
        s_add_u32 s{sW4}, s{sW4}, s50
        s_add_u32 s{sW4}, s{sW4}, {L.W4}
        s_lshl_b32 s{sFL}, s{sG}, 7
        s_add_u32 s{sFL}, s{sFL}, {L.FL}
        s_and_b32 s50, s{sG}, 7
        s_cmp_eq_u32 s50, 0
        s_cselect_b32 s54, 0, 1
        s_sub_u32 s50, s48, s54
        s_mul_i32 s{sHAL0}, s50, 20480
        s_add_u32 s{sHAL0}, s{sHAL0}, s{sM1}
        s_lshl_b32 s{sSTH0}, s50, 10
        s_add_u32 s{sSTH0}, s{sSTH0}, {L.ST[0]}
        s_sub_u32 s50, s{sG}, s54
        s_mul_i32 s{sHAL1}, s50, 20480
        s_add_u32 s{sHAL1}, s{sHAL1}, s{sM1}
        s_add_u32 s{sHAL1}, s{sHAL1}, {L.HX}
        s_lshl_b32 s{sSTH1}, s50, 10
        s_add_u32 s{sSTH1}, s{sSTH1}, {L.HST}
        s_lshl_b32 s{sFLP}, s50, 7
        s_add_u32 s{sFLP}, s{sFLP}, {L.FL + 8*2048}
        s_add_u32 s50, s54, s{sW}
        s_cmp_eq_u32 s50, 0
        s_cselect_b32 s{sFIRST}, 1, 0
        s_lshl_b32 s50, s53, 2
        s_add_u32 s48, s48, s50
        s_add_u32 s50, s50, s{sW}
        s_cmp_eq_u32 s50, 7
        s_cselect_b32 s{sHW}, 1, 0""")
        for t in range(4):
            e(f"""s_add_u32 s50, s{sW}, {1+t}
            s_and_b32 s50, s50, 3
            s_add_u32 s50, s50, s48
            s_mul_i32 s{sA2+t}, s50, 20480
            s_mul_i32 s51, s{sW}, 5120
            s_add_u32 s{sA2+t}, s{sA2+t}, s51
            s_mul_i32 s{sA4+t}, s50, 49152
            s_mul_i32 s51, s{sW}, 12288
            s_add_u32 s{sA4+t}, s{sA4+t}, s51""")
        e(f"""s_add_u32 s48, s48, s{sW}
        s_lshr_b32 s50, s52, 1
        s_and_b32 s51, s52, 1
        s_lshl_b32 s{sSTO}, s48, 10
        s_lshl_b32 s53, s50, 8
        s_add_u32 s{sSTO}, s{sSTO}, s53
        s_lshl_b32 s53, s51, 3
        s_add_u32 s{sSTO}, s{sSTO}, s53
        s_mul_i32 s{sXB}, s48, 20480
        s_mul_i32 s50, s50, 5120
        s_add_u32 s{sXB}, s{sXB}, s50
        s_mul_i32 s50, s51, 3072
        s_add_u32 s{sXA}, s{sXB}, s50
        s_add_u32 s{sXB}, s{sXB}, 2048
        s_add_u32 s{sXB}, s{sXB}, s53
        s_and_b32 s50, s48, 63
        s_lshl_b32 s50, s50, 5
        s_lshr_b32 s53, s48, 6
        s_add_u32 s50, s50, s53
        s_mul_i32 s50, s50, 1280
        s_mul_i32 s53, s52, 160
        s_add_u32 s50, s50, s53
        s_lshl_b32 s53, s51, 5
        s_add_u32 s{sOA}, s50, s53
        s_cmp_eq_u32 s51, 0
        s_cselect_b32 s53, 128, 0
        s_add_u32 s{sOB}, s50, s53""")
        e(f"""v_lshrrev_b32 v14, 4, v3
        v_and_b32 v15, 15, v3
        v_lshlrev_b32 v{vPOLL}, 2, v15
        v_mov_b32 v{vONE}, 1
        v_lshlrev_b32 v{vOX}, 4, v15
        v_lshl_add_u32 v{vOX}, v14, 3, v{vOX}
        v_cmp_eq_u32 s[{mG0}:{mG0+1}], 0, v14
        v_cmp_eq_u32 s[{mG1}:{mG1+1}], 1, v14
        v_cmp_gt_u32 s[{mLT2}:{mLT2+1}], 2, v14
        v_cmp_lt_u32 s[{mC8}:{mC8+1}], 7, v15
        v_and_b32 v16, 1, v14
        v_cmp_eq_u32 s[{mODD}:{mODD+1}], 1, v16
        s_min_u32 s50, s{sW}, 2
        s_add_u32 s50, s50, 2
        s_lshl_b32 s50, s50, 10
        v_add_u32 v{vHK}, s50, v{vL16}
        v_add_u32 v{vHK+1}, s50, v{vLDS1}
        v_add_u32 v{vHK+2}, s50, v{vLDS2}
        s_cmp_ge_u32 s{sW}, 2
        s_cselect_b64 s[{mH1}:{mH1+1}], s[{mC8}:{mC8+1}], 0
        v_lshrrev_b32 v17, 1, v14
        v_lshlrev_b32 v17, 8, v17
        v_lshl_add_u32 v17, v15, 4, v17
        s_movk_i32 s50, 20480
        v_mad_u32_u24 v{vA3}, v16, s50, v17
        s_mov_b32 s50, 49152
        v_mad_u32_u24 v{vHS}, v16, s50, v17
        v_lshl_add_u32 v{vST3}, v16, 10, v17
        v_lshrrev_b32 v18, 1, v14
        v_lshl_add_u32 v{vST3}, v18, 8, v{vST3}""")
        if self.cfg.get("fine"): self.stamp("scal")
        e(f"s_getreg_b32 s50, hwreg(HW_REG_XCC_ID)\ns_and_b32 s50, s50, 15\ns_or_b32 s50, s50, 0x100\nv_mov_b32 v16, s50")
        e(f"s_lshl_b32 s51, s{sM}, 2\ns_add_u32 s51, s51, s{sFL}\ns_add_u32 s51, s51, {15*2048}")
        e("s_mov_b64 exec, 1")
        e(f"buffer_store_dword v16, off, {WS}, s51 sc1")
        e("s_mov_b64 exec, -1")
        e(f"""s_mul_i32 s50, s{sM}, 25600
        s_add_u32 s50, s50, {L.CSP}
        s_lshl_b32 s51, s{sW}, 8
        s_add_u32 s51, s51, s50
        s_add_u32 s50, s50, 1024
        s_movk_i32 s52, 1280
        v_lshlrev_b32 v16, 4, v15
        v_mad_u32_u24 v16, v14, s52, v16""")
        CP = 176
        for k, sreg in enumerate((51, 50)):
            for i in range(5):
                e(f"buffer_load_dwordx4 {vr(CP+20*k+4*i,4)}, v16, {WS}, s{sreg} offen")
                if i < 4: e(f"s_add_u32 s{sreg}, s{sreg}, 5120")
        e(f"buffer_load_dwordx4 {vr(vXP,4)}, v{vL16}, {WS}, s{sXA} offen offset:{L.XA[0]}")
        e(f"buffer_load_dwordx4 {vr(vXP+4,4)}, v{vL16}, {WS}, s{sXA} offen offset:{L.XA[0]+1024}")
        e(f"buffer_load_dwordx2 {vr(vXP+8,2)}, v{vL16}, {WS}, s{sXB} offen offset:{L.XA[0]}")
        self.cs_pending = CP
    def cs_reduce(self):
        e = self.e; CP = self.cs_pending
        o = self.alloc("cs", CS_OFF, 1280); self.named["cs"] = o
        e(f"s_lshl_b32 s50, s{sW}, 8\ns_add_u32 s50, s50, {CS_OFF}")
        e(f"v_and_b32 v16, 0xf0, v{vL16}\nv_add_u32 v17, s50, v16\nv_add_u32 v16, {CS_OFF+1024}, v16")
        for k in range(2):
            b = CP + 20 * k
            for i in (1, 2, 3, 4):
                e(f"v_pk_add_f32 {vr(b,2)}, {vr(b,2)}, {vr(b+4*i,2)}")
                e(f"v_pk_add_f32 {vr(b+2,2)}, {vr(b+2,2)}, {vr(b+4*i+2,2)}")
            for sw in ("v_permlane16_swap_b32", "v_permlane32_swap_b32"):
                for r in range(4): e(f"v_mov_b32 v{b+4+r}, v{b+r}")
                for r in range(4): e(f"{sw} v{b+r}, v{b+4+r}")
                e(f"v_pk_add_f32 {vr(b,2)}, {vr(b,2)}, {vr(b+4,2)}")
                e(f"v_pk_add_f32 {vr(b+2,2)}, {vr(b+2,2)}, {vr(b+6,2)}")
            o.dsw = e(f"ds_write_b128 v{17-k}, {vr(b,4)}")

    def p1(self, l):
        e = self.e; N = self.named
        ACC, HACC, AR, BR, NB, DA = 16, 80, 88, 128, 12, 5
        STQ = 216
        STA, CQ = 228, 234
        STB, CSA, CSAH, CSV = 176, 200, 220, 224
        acc = lambda t, i: ACC + (2 * t + i) * 4
        def aload(k):
            def f0():
                r, imm = self.soff("a", sT + 3, sAX, L.XA[2 * l] + k * 1024)
                e(f"buffer_load_dwordx4 {vr(AR+(k%DA)*8,4)}, v{vL16}, {WS}, s{r} offen offset:{imm} sc1")
            def f1():
                r, imm = self.soff("a", sT + 3, sAX, L.XA[2 * l] + k * 1024)
                e(f"buffer_load_dwordx4 {vr(AR+(k%DA)*8+4,4)}, v{vL16B}, {WS}, s{r} offen offset:{imm} sc1")
            return [f0, f1]
        e(f"s_add_u32 s{sT}, s{sSTI}, {L.ST[2*l]}")
        if l == 0:
            for k in range(DA):
                for f in aload(k) + self.w1_chunk(l, k) + self.halo_block(l, k): f()
                if k == 0:
                    e(f"buffer_load_dwordx4 {vr(STQ,4)}, v{vL16}, {WS}, s{sT} offen sc1")
                    e(f"buffer_load_dwordx4 {vr(STQ+4,4)}, v{vL16}, {WS}, s{sT} offen offset:1024 sc1")
                    e(f"buffer_load_dwordx4 {vr(STQ+8,4)}, v{vL16}, {WS}, s{sSTH0} offen sc1")
            q = []
            for c in range(5, 17): q += self.w1_chunk(l, c)
            if self.cfg.get("fine"): self.stamp("issued")
            if self.cfg.get("fine"): e.wait(vm=11); self.stamp("csp")
            self.cs_reduce()
            if self.cfg.get("fine"): self.stamp("csred")
        else:
            for k in range(DA):
                for f in aload(k) + self.halo_block(l, k): f()
                if k == 0:
                    e(f"buffer_load_dwordx4 {vr(STQ,4)}, v{vL16}, {WS}, s{sT} offen sc1")
                    e(f"buffer_load_dwordx4 {vr(STQ+4,4)}, v{vL16}, {WS}, s{sT} offen offset:1024 sc1")
                    e(f"buffer_load_dwordx4 {vr(STQ+8,4)}, v{vL16}, {WS}, s{sSTH1} offen sc1")
            q = []
            for c in range(12, 17): q += self.w1_chunk(l, c)
        reads = []
        std = (vL16, vLDS1, vLDS2); hk = (vHK, vHK + 1, vHK + 2)
        mf = []; use = []
        for k in range(20):
            n0 = len(reads)
            cn = f"w1_{l}_{k}"
            for t in range(8): reads.append((cn, t * 1024, std, False))
            reads.append((f"ha_{l}_{k//4}", (k % 4) * 1024, std, k % 4 == 3))
            reads.append((cn, 0, hk, False))
            reads.append((cn, 3072, hk, True))
            fr = lambda n: vr(BR + 4 * (n % NB), 4)
            for t in range(8):
                for i in range(2):
                    A = vr(AR + (k % DA) * 8 + 4 * i, 4); C = vr(acc(t, i), 4) if k else "0"
                    a, b = (fr(n0 + t), A) if t <= 4 else (A, fr(n0 + t))
                    mf.append(f"v_mfma_f32_16x16x32_bf16 {vr(acc(t,i),4)}, {a}, {b}, {C}"); use.append([n0 + t])
            mf.append(f"v_mfma_f32_16x16x32_bf16 {vr(HACC,4)}, {fr(n0+9)}, {fr(n0+8)}, {vr(HACC,4) if k else 0}"); use.append([n0 + 8, n0 + 9])
            mf.append(f"v_mfma_f32_16x16x32_bf16 {vr(HACC+4,4)}, {fr(n0+8)}, {fr(n0+10)}, {vr(HACC+4,4) if k else 0}"); use.append([n0 + 8, n0 + 10])
        pre, post = {}, {}
        P = lambda d, i, f: d.setdefault(i, []).append(f)
        AH = 7
        tok = {}
        def mkread(n):
            def f():
                nm, off, bases, last = reads[n]
                tok[n] = self.rd(N[nm], BR + 4 * (n % NB), off, 4, bases, last)
            return f
        lastuse = {}; firstuse = {}
        for i, u in enumerate(use):
            for n in u: lastuse[n] = i; firstuse.setdefault(n, i)
        BARK = [k for k in range(20) if k % 2 == 0]
        def mkbar(k):
            def f():
                need = [N[f"w1_{l}_{c}"].vm for c in (k, k + 1)] + [N[f"ha_{l}_{c//4}"].vm for c in (k, k + 1)]
                e.wait(vm=max(need)); self.barrier()
            return f
        for n in range(AH, len(reads)):
            pos = max(firstuse[n - AH], lastuse.get(n - NB, 0))
            if n % 11 == 0 and (n // 11) in BARK: P(post, pos, mkbar(n // 11))
            P(post, pos, mkread(n))
        for n in range(0, len(reads), 2):
            P(pre, firstuse[n], (lambda n=n: e.wait(ds=tok.get(n + 1, tok[n]))))
        gate = {}
        for c in (17, 18, 19): gate[c] = self.w1_chunk(l, c)
        w2q = [self.w2_block(l, b)[0] for b in range(25)]
        extra = list(self.cfg.get(("p1extra", l), lambda s: [])(self))
        for k in range(20):
            base = 18 * k
            if k >= 1 and k + DA - 1 < 20:
                f0, f1 = aload(k + DA - 1); P(post, base + 1, f0); P(post, base + 4, f1)
            slots = [base + 7, base + 10, base + 13, base + 16]
            items = []
            if k in (3, 4, 5): items += gate[14 + k]
            while len(items) < 4 and q: items.append(q.pop(0))
            if k >= 5:
                while len(items) < (4 if k + DA - 1 >= 20 else 3) and w2q and (24 + 4 * (25 - len(w2q)) + 3) // 8 <= (k // 2) * 2 - 2 + (0 if k % 2 == 0 else 0):
                    items.append(w2q.pop(0))
            while len(items) < 4 and extra: items.append(extra.pop(0))
            for s, f in zip(slots, items): P(post, s, f)
        assert not q and not extra, (len(q), len(extra))
        def stats_all():
            for x in range(3): self.stats16(STQ + 4 * x, STA + 2 * x)
            so = self.alloc(f"stb{l}", STB_OFF, 1536, private=True); N["stb"] = so
            e(f"s_mul_i32 s{sT}, s{sW}, 384\ns_add_u32 s{sT}, s{sT}, {STB_OFF}")
            e(f"v_and_b32 v{STQ}, 0x100, v{vL16}\nv_lshrrev_b32 v{STQ}, 2, v{STQ}\nv_add3_u32 v{STQ}, v{STQ}, v{vPOLL}, s{sT}")
            e(f"v_lshrrev_b32 v{STQ+1}, 8, v{vL16}\nv_lshl_add_u32 v{STQ+1}, v{STQ+1}, 4, s{sT}")
            for x in range(3):
                e(f"v_cndmask_b32 v{STQ+2+x}, v{STA+2*x}, v{STA+2*x+1}, s[{mODD}:{mODD+1}]")
                so.dsw = e(f"ds_write_b32 v{STQ}, v{STQ+2+x} offset:{128*x}")
            e.wait(ds=so.dsw)
            for x in range(3):
                e(f"ds_read_b128 {vr(STB+8*x,4)}, v{STQ+1} offset:{128*x}")
                so.lastread = e(f"ds_read_b128 {vr(STB+8*x+4,4)}, v{STQ+1} offset:{128*x+64}")
            so.done = True
            c = f2u(20 ** -0.5 * LOG2E)
            e(f"v_mul_f32 v{CQ}, 0x{c:x}, v{STA+1}\nv_mul_f32 v{CQ+1}, 0x{c:x}, v{STA+3}")
        e.wait(vm=max(N[f"w1_{l}_{c}"].vm for c in (0, 1)))
        e.wait(vm=N[f"ha_{l}_0"].vm, ds=e.ds_seq)
        if self.cfg.get("fine"): self.stamp("landed")
        self.barrier()
        for n in range(AH): mkread(n)()
        stats_all()
        self.stamp(f"p1.{l}.loop")
        self.loop(mf, pre, post)
        for f in w2q: f()
        e.wait(ds=e.ds_seq)
        self.barrier()
        self.stamp(f"p1.{l}.epi")
        for f in self.cfg.get(("p1post", l), lambda s: [])(self): f()
        cs = N["cs"]
        T0 = 172
        e(f"v_lshrrev_b32 v{T0}, 8, v{vL16}\nv_lshlrev_b32 v{T0}, 4, v{T0}\nv_add_u32 v{T0}, {CS_OFF}, v{T0}")
        e(f"v_add_u32 v{T0+1}, {CS_OFF}, v{vPOLL}")
        e(f"s_min_u32 s{sT}, s{sW}, 2\ns_lshl_b32 s{sT}, s{sT}, 6")
        e(f"v_add_u32 v{T0+2}, s{sT}, v{T0}\nv_add_u32 v{T0+3}, s{sT}, v{T0+1}")
        for t in range(5): e(f"ds_read_b128 {vr(CSA+4*t,4)}, v{T0} offset:{64*t}")
        e(f"ds_read_b128 {vr(CSAH,4)}, v{T0+2} offset:128")
        for t in range(3): e(f"ds_read_b32 v{CSV+t}, v{T0+1} offset:{320+64*t}")
        e(f"ds_read_b32 v{CSV+3}, v{T0+3} offset:320")
        BO, BP, BP0 = 88, 92, 96
        QS, KS, VS, T4P, M4 = 100, 116, 134, 152, 156
        e(f"v_lshrrev_b32 v{T0}, 8, v{vL16}\nv_lshrrev_b32 v{T0+1}, 2, v{vPOLL}\nv_lshlrev_b32 v{T0}, 2, v{T0}\nv_sub_u32 v{T0}, v{T0+1}, v{T0}")
        e(f"v_mov_b32 v{T0+1}, 0x{f2u(-1e30):x}")
        for r in range(4):
            e(f"v_subrev_u32 v{T0+2}, {r}, v{T0}")
            e(f"v_cmp_gt_u32 vcc, 8, v{T0+2}")
            e(f"v_cndmask_b32 v{BO+r}, v{T0+1}, 0, vcc") if False else e(f"v_cndmask_b32_e64 v{BO+r}, v{T0+1}, 0, vcc")
            e(f"v_cmp_gt_i32 vcc, -8, v{T0+2}")
            e(f"v_cndmask_b32_e64 v{BP+r}, v{T0+1}, 0, vcc")
        e(f"s_cmp_eq_u32 s{sFIRST}, 1\ns_cselect_b64 vcc, -1, 0")
        for r in range(4): e(f"v_cndmask_b32 v{BP0+r}, v{BP+r}, v{T0+1}, vcc")
        for i in range(2): e(f"v_cndmask_b32_e64 v{M4+i}, v{STA+2*i+1}, 1.0, s[{mLT2}:{mLT2+1}]")
        def foldA(a, cs4, st, mul, dst):
            for h in range(2):
                e(f"v_pk_fma_f32 {vr(a+2*h,2)}, {vr(cs4+2*h,2)}, {vr(st,2)}, {vr(a+2*h,2)} op_sel_hi:[1,0,1] neg_lo:[0,1,0] neg_hi:[0,1,0]")
            if mul:
                for h in range(2):
                    e(f"v_pk_mul_f32 {vr(a+2*h,2)}, {vr(a+2*h,2)}, {vr(mul[0],2)} op_sel:[0,{mul[1]}] op_sel_hi:[1,{mul[1]}]")
            for d in dst:
                for h in range(2): e(f"v_cvt_pk_bf16_f32 v{d+h}, v{a+2*h}, v{a+2*h+1}")
        def foldB(a, csr, stb, dst):
            pr, sel = csr & ~1, csr & 1
            for h in range(2):
                e(f"v_pk_fma_f32 {vr(a+2*h,2)}, {vr(stb+2*h,2)}, {vr(pr,2)}, {vr(a+2*h,2)} op_sel:[0,{sel},0] op_sel_hi:[1,{sel},1] neg_lo:[1,0,0] neg_hi:[1,0,0]")
            for h in range(2):
                e(f"v_pk_mul_f32 {vr(a+2*h,2)}, {vr(a+2*h,2)}, {vr(stb+4+2*h,2)}")
            for h in range(2): e(f"v_cvt_pk_bf16_f32 v{dst+h}, v{a+2*h}, v{a+2*h+1}")
        ks = lambda x: KS + 6 * x
        vs = lambda t, x: VS + 6 * (t - 5) + 2 * x
        ONES = 158
        e(f"v_mov_b32 v{ONES}, 0x3f803f80")
        xb = self.alloc(f"xb{l}", XB_OFF, 15360)
        HP = 160
        foldA(HACC, CSAH, STA + 4, (STA + 4, 1), [HP])
        foldB(HACC + 4, CSV + 3, STB + 16, HP + 2)
        for h in range(2): e(f"v_cndmask_b32 v{HP+2+h}, v{HP+2+h}, v{ONES}, s[{mH1}:{mH1+1}]")
        e(f"""v_lshrrev_b32 v{T0}, 1, v{vL16}
        s_cmp_ge_u32 s{sW}, 2
        s_cselect_b32 s{sT}, 256, 0
        s_cselect_b32 s{sT+4}, 512, s{sM1}
        v_xor_b32 v{T0+1}, s{sT}, v{T0}
        s_add_u32 s{sT+4}, s{sT+4}, {XB_OFF}
        v_add_u32 v{T0+1}, s{sT+4}, v{T0+1}
        s_min_u32 s{sT}, s{sW}, 2
        s_lshl_b32 s{sT}, s{sT}, 9
        s_add_u32 s{sT}, s{sT}, {XB_OFF+1536}
        v_add_u32 v{T0+2}, s{sT}, v{T0}
        s_add_u32 s{sT}, s{sM3}, {XB_OFF}
        v_add_u32 v{T0}, s{sT}, v{T0}""")
        e(f"ds_write_b64 v{T0+1}, {vr(HP,2)}")
        e(f"ds_write_b64 v{T0+2}, {vr(HP+2,2)}")
        def kv(i):
            foldA(acc(2, i), CSA + 8, STA + 2 * i, (STA + 2 * i, 1), [ks(1 + i)])
            foldA(acc(3, i), CSA + 12, STA + 2 * i, (STA + 2 * i, 1), [ks(1 + i) + 4])
            foldA(acc(4, i), CSA + 16, STA + 2 * i, (M4, i), [T4P + 2 * i, ks(1 + i) + 2])
            for h in range(2):
                e(f"v_cndmask_b32_e64 v{QS+8*i+2+h}, 0, v{T4P+2*i+h}, s[{mG0}:{mG0+1}]")
                e(f"v_cndmask_b32_e64 v{QS+8*i+4+h}, 0, v{T4P+2*i+h}, s[{mG1}:{mG1+1}]")
            for t in (5, 6, 7): foldB(acc(t, i), CSV + t - 5, STB + 8 * i, vs(t, 1 + i))
            for h in range(2): e(f"v_permlane32_swap_b32 v{T4P+2*i+h}, v{ks(1+i)+2+h}")
            for h in range(2): e(f"v_cndmask_b32 v{vs(7,1+i)+h}, v{vs(7,1+i)+h}, v{ONES}, s[{mC8}:{mC8+1}]")
        kv(1)
        for p in range(3): e(f"ds_write_b64 v{T0}, {vr(ks(2)+2*p,2)} offset:{3072+512*p}")
        for p in range(3): xb.dsw = e(f"ds_write_b64 v{T0}, {vr(vs(5+p,2),2)} offset:{3072+1536+512*p}")
        kv(0)
        e.wait(ds=xb.dsw); self.barrier()
        for p in range(3): e(f"ds_read_b64 {vr(ks(0)+2*p,2)}, v{T0} offset:{512*p}")
        for p in range(3): xb.lastread = e(f"ds_read_b64 {vr(vs(5+p,0),2)}, v{T0} offset:{1536+512*p}")
        xb.done = True
        for i in range(2):
            foldA(acc(0, i), CSA, STA + 2 * i, None, [QS + 8 * i])
            foldA(acc(1, i), CSA + 4, STA + 2 * i, None, [QS + 8 * i + 6])
        SS, PP, OM, OXR, MM = 16, 48, 64, 160, 152
        combos = [(0, 0), (0, 1), (1, 0), (1, 1)]
        for c in (2, 3, 0, 1):
            i, h = combos[c]
            e(f"v_mfma_f32_16x16x32_bf16 {vr(SS+8*c+4,4)}, {vr(ks(1+i)+2*h,4)}, {vr(QS+8*i+4*h,4)}, {vr(BO,4)}")
            e(f"v_mfma_f32_16x16x32_bf16 {vr(SS+8*c,4)}, {vr(ks(i)+2*h,4)}, {vr(QS+8*i+4*h,4)}, {vr(BP if i else BP0,4)}")
        CQS = 156
        e(f"v_cndmask_b32 v{CQS}, v{CQ+1}, v{CQ}, s[{mLT2}:{mLT2+1}]")
        for st in range(4):
            for c in (2, 3, 0, 1):
                s = SS + 8 * c
                if st == 0: e(f"v_max3_f32 v{MM+c}, v{s}, v{s+1}, v{s+2}")
                elif st < 3: e(f"v_max3_f32 v{MM+c}, v{MM+c}, v{s+1+2*st}, v{s+2+2*st}")
                else: e(f"v_max_f32 v{MM+c}, v{MM+c}, v{s+7}")
        e(f"""v_permlane16_swap_b32 v{MM+2}, v{MM+3}
        v_permlane16_swap_b32 v{MM}, v{MM+1}
        v_max_f32 v{MM+2}, v{MM+2}, v{MM+3}
        v_max_f32 v{MM}, v{MM}, v{MM+1}
        v_permlane32_swap_b32 v{MM}, v{MM+2}
        v_max_f32 v{MM}, v{MM}, v{MM+2}
        v_mul_f32_e64 v{MM}, -v{MM}, v{CQS}
        v_mov_b32 v{MM+2}, v{MM}
        v_permlane32_swap_b32 v{MM}, v{MM+2}
        v_mov_b32 v{MM+1}, v{MM}
        v_mov_b32 v{MM+3}, v{MM+2}
        v_permlane16_swap_b32 v{MM}, v{MM+1}
        v_permlane16_swap_b32 v{MM+2}, v{MM+3}""")
        for c in range(4):
            i, h = combos[c]; s = SS + 8 * c
            for k in range(4):
                e(f"v_pk_fma_f32 {vr(s+2*k,2)}, {vr(s+2*k,2)}, {vr(CQ,2)}, {vr(MM+(c&~1),2)} op_sel:[0,{i},{c&1}] op_sel_hi:[1,{i},{c&1}]")
            for k in range(8): e(f"v_exp_f32 v{s+k}, v{s+k}")
            for k in range(4): e(f"v_cvt_pk_bf16_f32 v{PP+4*c+k}, v{s+2*k}, v{s+2*k+1}")
            e(f"v_mfma_f32_16x16x32_bf16 {vr(OXR+4*c,4)}, {vr(vs(7,i),4)}, {vr(PP+4*c,4)}, 0")
            e(f"v_mfma_f32_16x16x32_bf16 {vr(OM+4*c,4)}, {vr(vs(5+h,i),4)}, {vr(PP+4*c,4)}, 0")
        INV, OUTM, OUTX = 100, 104, 112
        e(f"s_add_u32 s{sT}, s{sOM}, {L.OA[l]}\ns_add_u32 s{sT+4}, s{sOX}, {L.OA[l]}")
        e(f"v_add_u32 v{OUTX+8}, 20480, v{vOX}")
        for i in range(2):
            for h in range(2):
                c = 2 * i + h
                e(f"v_mov_b32 v{INV+c}, v{OXR+4*c}")
            for h in range(2): e(f"v_permlane32_swap_b32 v{OXR+4*(2*i+h)}, v{INV+2*i+h}")
            for h in range(2): e(f"v_rcp_f32 v{INV+2*i+h}, v{INV+2*i+h}")
            for r in range(4): e(f"v_cndmask_b32 v{OXR+8*i+r}, v{OXR+8*i+4+r}, v{OXR+8*i+r}, s[{mG0}:{mG0+1}]")
            for h in range(2):
                c = 2 * i + h
                for k in range(2): e(f"v_pk_mul_f32 {vr(OM+4*c+2*k,2)}, {vr(OM+4*c+2*k,2)}, {vr(INV+2*i,2)} op_sel:[0,{h}] op_sel_hi:[1,{h}]")
                for k in range(2): e(f"v_cvt_pk_bf16_f32 v{OUTM+4*i+2*h+k}, v{OM+4*c+2*k}, v{OM+4*c+2*k+1}")
            e(f"buffer_store_dwordx4 {vr(OUTM+4*i,4)}, v{vL16B if i else vL16}, {WS}, s{sT} offen")
            e(f"v_cndmask_b32 v{OUTX+4+2*i}, v{INV+2*i+1}, v{INV+2*i}, s[{mG0}:{mG0+1}]")
            for k in range(2): e(f"v_pk_mul_f32 {vr(OXR+8*i+2*k,2)}, {vr(OXR+8*i+2*k,2)}, {vr(OUTX+4+2*i,2)} op_sel_hi:[1,0]")
            for k in range(2): e(f"v_cvt_pk_bf16_f32 v{OUTX+2*i+k}, v{OXR+8*i+2*k}, v{OXR+8*i+2*k+1}")
        e("s_mov_b32 exec_hi, 0")
        e(f"buffer_store_dwordx2 {vr(OUTX,2)}, v{vOX}, {WS}, s{sT+4} offen")
        e(f"buffer_store_dwordx2 {vr(OUTX+2,2)}, v{OUTX+8}, {WS}, s{sT+4} offen")
        e("s_mov_b32 exec_hi, -1")
        e(f"v_add_u32 v16, s{sM1}, v{vL16}\nv_add_u32 v17, s{sM1}, v{vLDS1}")
        for b in range(25): self.rd(N[f"w2_{l}_{b}"], 128 + 4 * b, 0, 4, (16, 17, 17), True)
        self.stamp(f"p1.{l}.done")
        if l == 0:
            e.wait_all()
            self.poll(sFL, 15 * 2048, vPOLL, 18, acquire=False)
            e(f"v_readfirstlane_b32 s{sT}, v18")
            e(f"v_cmp_ne_u32 vcc, s{sT}, v18")
            e("s_cmp_eq_u64 vcc, 0")
            e(f"s_cselect_b32 s{sLOC}, 1, 0")
            if self.cfg.get("force_slow"): e(f"s_mov_b32 s{sLOC}, 0")
        self.signal(4 * l)

    def pk(self, l, four):
        e = self.e; N = self.named
        NK = 12 if four else 5
        tag = f"p{4 if four else 2}.{l}"
        ACC = (16, 36); AR = 56
        NA = 18 if not four else 24
        if not four: NA = 18
        PRT = 152 if four else 56
        abase = (L.HA if four else L.OA)[l]; sA = sA4 if four else sA2
        wf = (lambda ks, t: ar(4 * (ks * 5 + t), 4)) if four else (lambda ks, t: vr(128 + 4 * (ks * 5 + t), 4))
        nfr = 4 * NK
        def aload(n):
            def f():
                r, imm = self.soff("a", sT + 3, sA + n // NK, abase + (n % NK) * 1024)
                e(f"buffer_load_dwordx4 {vr(AR+4*(n%NA),4)}, v{vL16}, {WS}, s{r} offen offset:{imm} sc1")
            return f
        for n in range(NA): aload(n)()
        VW, VR = 228, 231
        for t in range(3):
            e(f"s_add_u32 s{sT}, s{sW}, {1+t}\ns_and_b32 s{sT}, s{sT}, 3\ns_mul_i32 s{sT}, s{sT}, 15360\ns_add_u32 s{sT}, s{sT}, {PART_OFF + t*5120}")
            e(f"v_add_u32 v{VW+t}, s{sT}, v{vL16}")
        e(f"s_mul_i32 s{sT}, s{sW}, 15360\ns_add_u32 s{sT}, s{sT}, {PART_OFF}\nv_add_u32 v{VR}, s{sT}, v{vL16}")
        po = self.alloc(f"part{tag}", PART_OFF, 61440)
        mf = []; pre = {}; post = {}
        P = lambda d, i, f: d.setdefault(i, []).append(f)
        for t in range(4):
            for ks in range(NK):
                n = t * NK + ks
                for tp in range(5):
                    a = ACC[t & 1] + 4 * tp
                    C = vr(a, 4) if (ks or t == 3) else "0"
                    mf.append(f"v_mfma_f32_16x16x32_bf16 {vr(a,4)}, {wf(ks,tp)}, {vr(AR+4*(n%NA),4)}, {C}")
                if n + NA < nfr: P(post, 5 * n + 5, aload(n + NA))
        R = 5 * NK
        def pw(t, tp):
            def f(): po.dsw = e(f"ds_write_b128 v{VW+t}, {vr(ACC[t&1]+4*tp,4)} offset:{1024*tp}")
            return f
        for t in range(3):
            for tp in range(5): P(post, R * (t + 1) + 3 + 2 * tp, pw(t, tp))
        ux = []
        for k in range(10):
            ux.append(f"v_lshlrev_b32 v{ACC[1]+2*k}, 16, v{vXP+k}")
            ux.append(f"v_and_b32 v{ACC[1]+2*k+1}, 0xffff0000, v{vXP+k}")
        for k, s in enumerate(ux): P(post, 2 * R + 12 + k // 2, s)
        def bar():
            e.wait(ds=po.dsw); self.barrier()
        P(post, 3 * R + 12, bar)
        if not four: prt = lambda s, tp: (AR + 8 + 20 * s + 4 * tp) if s < 2 else ACC[0] + 4 * tp
        else: prt = lambda s, tp: PRT + 20 * s + 4 * tp
        def pr(s, tp):
            def f():
                t = e(f"ds_read_b128 {vr(prt(s,tp),4)}, v{VR} offset:{5120*s+1024*tp}"); po.lastread = t
                assert po.landed is not None
            return f
        items = [pr(s, tp) for tp in range(5) for s in range(3)]
        for k, f in enumerate(items): P(post, 3 * R + 12 + (k // 2 if not four else k), f)
        adds = []
        for tp in range(5):
            for h in range(2):
                adds.append(f"v_pk_add_f32 {vr(prt(0,tp)+2*h,2)}, {vr(prt(0,tp)+2*h,2)}, {vr(prt(1,tp)+2*h,2)}")
                adds.append(f"v_pk_add_f32 {vr(prt(0,tp)+2*h,2)}, {vr(prt(0,tp)+2*h,2)}, {vr(prt(2,tp)+2*h,2)}")
        if four:
            for k, s in enumerate(adds): P(post, 3 * R + 34 + k, s)
            adds = []
        extra = list(self.cfg.get((tag[:2] + "extra", l), lambda s: [])(self))
        k = 3
        while extra:
            assert k < 3 * R, "too many extras"
            P(post, k, extra.pop(0)); k += self.cfg.get("pkstep", 5)
        self.stamp(tag + ".loop")
        self.loop(mf, pre, post)
        po.done = True
        self.stamp(tag + ".epi")
        for s in adds: e(s)
        A1 = ACC[1]
        for tp in range(5):
            for h in range(2): e(f"v_pk_add_f32 {vr(A1+4*tp+2*h,2)}, {vr(A1+4*tp+2*h,2)}, {vr(prt(0,tp)+2*h,2)}")
            for h in range(2): e(f"v_cvt_pk_bf16_f32 v{vXP+2*tp+h}, v{A1+4*tp+2*h}, v{A1+4*tp+2*h+1}")
        if four and l == 1:
            e(f"v_lshrrev_b32 v16, 8, v{vL16}\nv_lshrrev_b32 v17, 2, v{vPOLL}\ns_movk_i32 s{sT}, 2560\nv_lshlrev_b32 v16, 3, v16\nv_mad_u32_u24 v16, v17, s{sT}, v16")
            for tp in range(4): e(f"buffer_store_dwordx2 {vr(vXP+2*tp,2)}, v16, {OUT}, s{sOA} offen offset:{32*tp}")
            e(f"buffer_store_dwordx2 {vr(vXP+8,2)}, v16, {OUT}, s{sOB} offen")
            return
        xi = 2 * l + (2 if four else 1)
        e(f"s_add_u32 s{sT}, s{sXA}, {L.XA[xi]}\ns_add_u32 s{sT+4}, s{sXB}, {L.XA[xi]}\ns_add_u32 s{sT+5}, s{sSTO}, {L.ST[xi]}")
        e(f"buffer_store_dwordx4 {vr(vXP,4)}, v{vL16}, {WS}, s{sT} offen")
        e(f"buffer_store_dwordx4 {vr(vXP+4,4)}, v{vL16}, {WS}, s{sT} offen offset:1024")
        e(f"buffer_store_dwordx2 {vr(vXP+8,2)}, v{vL16}, {WS}, s{sT+4} offen")
        e("v_mov_b32 v20, 0x3f803f80")
        for k in range(10):
            c0 = f"v{16+2*(k&1)}" if k >= 2 else "0"; c1 = f"v{17+2*(k&1)}" if k >= 2 else "0"
            e(f"v_dot2_f32_bf16 v{16+2*(k&1)}, v{vXP+k}, v20, {c0}")
            e(f"v_dot2_f32_bf16 v{17+2*(k&1)}, v{vXP+k}, v{vXP+k}, {c1}")
        e("""v_pk_add_f32 v[16:17], v[16:17], v[18:19]
        v_permlane16_swap_b32 v16, v17
        v_add_f32 v16, v16, v17
        v_mov_b32 v17, v16
        v_permlane32_swap_b32 v16, v17
        v_add_f32 v16, v16, v17
        v_mov_b32 v17, v16
        v_permlane16_swap_b32 v16, v17
        s_mov_b32 exec_lo, 0xffff
        s_mov_b32 exec_hi, 0""")
        e(f"buffer_store_dwordx2 v[16:17], v{vL16}, {WS}, s{sT+5} offen")
        e("s_mov_b64 exec, -1")
        self.stamp(tag + ".done")
        self.signal(4 * l + (3 if four else 1))
        if four:
            lab = e.label("HW")
            e(f"s_cmp_eq_u32 s{sHW}, 0\ns_cbranch_scc1 {lab}")
            d = f"""s_mul_i32 s{sT+6}, s{sG}, {7*20480}
            s_add_u32 s{sT+6}, s{sT+6}, {7*20480}
            s_sub_u32 s{sT}, s{sXA}, s{sT+6}
            s_add_u32 s{sT}, s{sT}, {L.HX}
            s_sub_u32 s{sT+4}, s{sXB}, s{sT+6}
            s_add_u32 s{sT+4}, s{sT+4}, {L.HX}
            buffer_store_dwordx4 {vr(vXP,4)}, v{vL16}, {WS}, s{sT} offen sc1
            buffer_store_dwordx4 {vr(vXP+4,4)}, v{vL16}, {WS}, s{sT} offen offset:1024 sc1
            buffer_store_dwordx2 {vr(vXP+8,2)}, v{vL16}, {WS}, s{sT+4} offen sc1
            s_mul_i32 s{sT+6}, s{sG}, {7*1024}
            s_add_u32 s{sT+6}, s{sT+6}, {7*1024}
            s_sub_u32 s{sT+5}, s{sSTO}, s{sT+6}
            s_add_u32 s{sT+5}, s{sT+5}, {L.HST}
            s_mov_b32 exec_lo, 0xffff
            s_mov_b32 exec_hi, 0
            buffer_store_dwordx2 v[16:17], v{vL16}, {WS}, s{sT+5} offen sc1
            s_waitcnt vmcnt(0)
            s_lshl_b32 s{sT}, s{sM}, 2
            s_add_u32 s{sT}, s{sT}, s{sFL}
            s_add_u32 s{sT}, s{sT}, {8*2048}
            s_mov_b64 exec, 1
            buffer_store_dword v{vONE}, off, {WS}, s{sT} sc1
            s_mov_b64 exec, -1"""
            for ln in d.split("\n"): e.raw(ln.strip())
            e.place(lab)

    def p3(self, l):
        e = self.e; N = self.named
        ACC, AR, DA, BR, NB, AH = 16, 112, 6, 160, 8, 6
        STQ, MU, C3, SG = 192, 200, 202, 203
        xi = 2 * l + 1
        def aload(k, ee):
            def f():
                r, imm = self.soff("a", sT + 3, sAX, L.XA[xi] + k * 1024 + ee * 512)
                e(f"buffer_load_dwordx4 {vr(AR+(k%DA)*8+4*ee,4)}, v{vA3}, {WS}, s{r} offen offset:{imm} sc1")
            return f
        e(f"s_add_u32 s{sT}, s{sSTI}, {L.ST[xi]}")
        for k in range(DA):
            aload(k, 0)(); aload(k, 1)()
            if k == 0:
                e(f"buffer_load_dwordx4 {vr(STQ,4)}, v{vST3}, {WS}, s{sT} offen sc1")
                e(f"buffer_load_dwordx4 {vr(STQ+4,4)}, v{vST3}, {WS}, s{sT} offen offset:256 sc1")
        q = []
        for c in range(20):
            if f"w3_{l}_{c}" not in N: q.append((c, self.w3_chunk(l, c)))
        mf = []; pre = {}; post = {}; tok = {}
        P = lambda d, i, f: d.setdefault(i, []).append(f)
        for k in range(20):
            for j in range(12):
                n = 12 * k + j; a = ACC + 16 * (j % 6)
                mf.append(f"v_mfma_f32_32x32x16_bf16 {vr(a,16)}, {vr(BR+4*(n%NB),4)}, {vr(AR+(k%DA)*8+4*(j//6),4)}, {vr(a,16) if n >= 6 else 0}")
        def mkread(n):
            def f(): tok[n] = self.rd(N[f"w3_{l}_{n//12}"], BR + 4 * (n % NB), (n % 12) * 1024, 4, last=(n % 12 == 11))
            return f
        def mkbar(k):
            def f():
                e.wait(vm=max(N[f"w3_{l}_{c}"].vm for c in (k, k + 1))); self.barrier()
            return f
        for n in range(AH, 240):
            if n % 24 == 0: P(post, n - AH, mkbar(n // 12))
            P(post, n - AH, mkread(n))
        for n in range(0, 240, 2): P(pre, n, (lambda n=n: e.wait(ds=tok[n + 1])))
        extra = list(self.cfg.get(("p3extra", l), lambda s: [])(self))
        for k in range(20):
            b = 12 * k
            if k >= 1 and k + DA - 1 < 20:
                P(post, b + 0, aload(k + DA - 1, 0)); P(post, b + 2, aload(k + DA - 1, 1))
            slots = [b + 4, b + 6, b + 8, b + 10, b + 1, b + 3, b + 5, b + 7, b + 9, b + 11] if k + DA - 1 < 20 else [b + i for i in (0, 2, 4, 6, 8, 10, 1, 3, 5, 7)]
            items = []
            if q:
                c = q[0][0]
                prev = self.W3SLOT[c] if c >= 13 else None
                if prev is None or k >= ((prev + 3) // 2) * 2: items += q.pop(0)[1]
            nmax = self.cfg.get("p3rate", 4)
            while len(items) < nmax and extra and extra[0][0] <= k: items.append(extra.pop(0)[1])
            for s, f in sorted(zip(slots, range(len(items)))): pass
            for s, f in zip(sorted(slots[:len(items)]), items): P(post, s, f)
        assert not q and not extra, (len(q), len(extra))
        e.wait(vm=max(N[f"w3_{l}_{c}"].vm for c in (0, 1)), ds=e.ds_seq)
        self.barrier()
        for n in range(AH): mkread(n)()
        e(f"v_pk_add_f32 {vr(STQ,2)}, {vr(STQ,2)}, {vr(STQ+2,2)}")
        e(f"v_pk_add_f32 {vr(STQ+4,2)}, {vr(STQ+4,2)}, {vr(STQ+6,2)}")
        e(f"v_pk_add_f32 {vr(STQ,2)}, {vr(STQ,2)}, {vr(STQ+4,2)}")
        e(f"v_mov_b32 v{STQ+2}, v{STQ}\nv_mov_b32 v{STQ+3}, v{STQ+1}")
        e(f"v_permlane32_swap_b32 v{STQ}, v{STQ+2}\nv_permlane32_swap_b32 v{STQ+1}, v{STQ+3}")
        e(f"v_pk_add_f32 {vr(STQ,2)}, {vr(STQ,2)}, {vr(STQ+2,2)}")
        self.stats_fin(STQ, MU)
        e(f"v_mul_f32 v{C3}, 0x{f2u(-LOG2E):x}, v{MU+1}")
        e(f"v_mul_f32 v{SG}, v{STQ+1}, v{MU+1}")
        e(f"v_lshrrev_b32 v{STQ}, 9, v{vL16}\nv_lshlrev_b32 v{STQ}, 4, v{STQ}\nv_add_u32 v{STQ}, {CS_OFF+512}, v{STQ}")
        self.stamp(f"p3.{l}.loop")
        self.loop(mf, pre, post)
        self.stamp(f"p3.{l}.epi")
        e(f"s_add_u32 s{sT}, s{sH}, {L.HA[l]}")
        CSR = 112
        def csload(T):
            for m_ in range(2):
                for i in range(4): e(f"ds_read_b128 {vr(CSR+32*(T&1)+16*m_+4*i,4)}, v{STQ} offset:{(2*T+m_)*128+32*i}")
        csload(0); csload(1)
        OUTR = 204
        for T in range(3):
            G, U, c = ACC + 32 * T, ACC + 32 * T + 16, CSR + 32 * (T & 1)
            for k in range(8):
                e(f"v_pk_fma_f32 {vr(G+2*k,2)}, {vr(c+2*k,2)}, {vr(MU,2)}, {vr(G+2*k,2)} op_sel_hi:[1,0,1] neg_lo:[0,1,0] neg_hi:[0,1,0]")
            for k in range(8):
                e(f"v_pk_mul_f32 {vr(G+2*k,2)}, {vr(G+2*k,2)}, {vr(C3,2)} op_sel_hi:[1,0]")
            for k in range(8):
                e(f"v_exp_f32 v{G+2*k}, v{G+2*k}\nv_exp_f32 v{G+2*k+1}, v{G+2*k+1}")
                e(f"v_pk_fma_f32 {vr(U+2*k,2)}, {vr(c+16+2*k,2)}, {vr(MU,2)}, {vr(U+2*k,2)} op_sel_hi:[1,0,1] neg_lo:[0,1,0] neg_hi:[0,1,0]")
            if T == 0: csload(2)
            for k in range(8):
                e(f"v_pk_fma_f32 {vr(G+2*k,2)}, {vr(G+2*k,2)}, {vr(C3,2)}, {vr(C3,2)} op_sel:[0,1,1] op_sel_hi:[1,1,1]")
            for ip in range(2):
                o = OUTR + 4 * ((2 * T + ip) % 4)
                for k in range(4 * ip, 4 * ip + 4):
                    e(f"v_rcp_f32 v{G+2*k}, v{G+2*k}\nv_rcp_f32 v{G+2*k+1}, v{G+2*k+1}")
                for k in range(4 * ip, 4 * ip + 4):
                    e(f"v_pk_mul_f32 {vr(U+2*k,2)}, {vr(U+2*k,2)}, {vr(G+2*k,2)}")
                for k in range(4 * ip, 4 * ip + 4):
                    e(f"v_cvt_pk_bf16_f32 v{o+k-4*ip}, v{U+2*k}, v{U+2*k+1}")
                e(f"buffer_store_dwordx4 {vr(o,4)}, v{vHS}, {WS}, s{sT} offen offset:{T*1024+ip*512}")
        self.stamp(f"p3.{l}.done")
        self.signal(4 * l + 2)

    def build(self):
        e = self.e
        self.prologue()
        for l in range(2):
            if l == 1:
                self.poll(sFL, 3 * 2048, vPOLL, 18)
                e(f"v_and_b32 v19, 28, v{vPOLL}\nv_add_u32 v19, 32, v19")
                self.poll(sFLP, 0, 19, 18, acquire=False); self.stamp("polled")
            self.p1(l)
            if self.stop == f"p1.{l}": break
            self.poll(sFL, (4 * l) * 2048, vPOLL, 18); self.stamp("polled")
            self.pk(l, False)
            if self.stop == f"p2.{l}": break
            self.poll(sFL, (4 * l + 1) * 2048, vPOLL, 18); self.stamp("polled")
            self.p3(l)
            if self.stop == f"p3.{l}": break
            self.poll(sFL, (4 * l + 2) * 2048, vPOLL, 18); self.stamp("polled")
            self.pk(l, True)
            if self.stop == f"p4.{l}": break
        self.finish()
        return e

def flat(ll): return [x for l in ll for x in l]
def default_cfg():
    cfg = {}
    for l in range(2):
        cfg[("p1post", l)] = lambda s, l=l: flat(s.w3_chunk(l, c) for c in (0, 1))
        cfg[("p2extra", l)] = lambda s, l=l: flat(s.w3_chunk(l, c) for c in range(2, 8))
    cfg["pkstep"] = 4
    def p3x(s):
        out = []
        w4 = [s.w4_load(n)[0] for n in range(60)]
        w1 = []
        for c in range(12):
            last = max({0: 13, 1: 14, 2: 15}.get(sl, sl) for sl in ((8 * c) // 12, (8 * c + 7) // 12))
            for f in s.w1_chunk(1, c): w1.append((((last + 3) // 2) * 2, f))
        w1.sort(key=lambda x: x[0])
        ev = [(0, f) for f in w4]
        return ev + w1
    cfg[("p3extra", 0)] = p3x
    cfg["p3rate"] = 6
    return cfg

if __name__ == "__main__":
    import sys
    from asmlib import wrap, NAME
    from k0 import gen_k0, RS
    import json
    import subprocess
    def code_bytes(body):
        open("cb.s", "w").write('.amdgcn_target "amdgcn-amd-amdhsa--gfx950"\n.text\n' + body)
        subprocess.check_call(["clang", "-x", "assembler", "-target", "amdgcn-amd-amdhsa", "-mcpu=gfx950", "-c", "cb.s", "-o", "cb.o"])
        subprocess.check_call(["llvm-objcopy", "-O", "binary", "-j", ".text", "cb.o", "cb.bin"])
        import os
        return os.path.getsize("cb.bin")
    def make(path, stamps=False, stop=None, **over):
        cfg = default_cfg(); cfg.update(over)
        m = Main(stamps=stamps, stop=stop, cfg=cfg); e = m.build()
        nbytes = code_bytes(e.text())
        k0 = gen_k0(store_mod=cfg.get("k0mod", ""), warm_label="main_kernel" if cfg.get("warm", True) else None, warm_bytes=nbytes)
        ks = [dict(name="prep_kernel", body=k0.text(), grid=256, block=256, lds=32*RS, vgpr=176, accum=176),
              dict(name="main_kernel", body=e.text(), grid=256, block=256, lds=160*1024, vgpr=512, accum=256)]
        if cfg.get("empty"): ks.append(dict(name="empty_kernel", body="s_endpgm\n", grid=256, block=256, lds=0, vgpr=8, accum=8))
        if cfg.get("twice"): ks = ks + ks
        if cfg.get("k0twice"): ks = [ks[0]] + ks
        txt = wrap(ks)
        open(path, "w").write(txt)
        print(path, e.stat, len(txt), "bytes")
        json.dump(m.stamp_names, open(path + ".stamps", "w"))
        return e
    make("vD.s", k0mod="sc1"); make("vF.s", k0mod="sc1", twice=True); make("vG.s", k0mod="sc1", k0twice=True)
    e = make("full.s")
    make("full_st.s", stamps=True)
    make("fine_st.s", stamps=True, fine=True, stop="p2.0")
```

```python
from emit import *
import layout as L

RS = 1312

def gen_k0(store_mod="", warm_label=None, warm_bytes=0, dbg=False):
    e = Em()
    SM = (" " + store_mod) if store_mod else ""
    sW = 40; sBID = 2
    e("s_cmp_ge_u32 s2, 256")
    e("s_cbranch_scc1 K0_end")
    e("s_load_dwordx4 s[4:7], s[0:1], 0")
    e("s_load_dwordx2 s[8:9], s[0:1], 16")
    e("s_load_dwordx4 s[12:15], s[0:1], 32")
    e("s_load_dwordx2 s[16:17], s[0:1], 48")
    e("s_load_dwordx2 s[18:19], s[0:1], 72")
    if dbg: e("s_memrealtime s[80:81]\ns_load_dwordx2 s[84:85], s[0:1], 64")
    e("v_lshrrev_b32 v1, 6, v0")
    e(f"v_readfirstlane_b32 s{sW}, v1")
    e("v_and_b32 v0, 63, v0")
    e("v_lshlrev_b32 v2, 4, v0")
    e("v_lshrrev_b32 v3, 4, v0")
    e("v_and_b32 v4, 15, v0")
    e("v_lshrrev_b32 v5, 2, v4")
    e("v_and_b32 v6, 3, v4")
    e("s_mov_b32 s24, s4\ns_mov_b32 s25, s5\ns_mov_b32 s26, 2621440\ns_mov_b32 s27, 0x20000")
    e(f"s_mov_b32 s28, s18\ns_mov_b32 s29, s19\ns_mov_b32 s30, {L.WS_USED}\ns_mov_b32 s31, 0x20000")
    e("s_mov_b32 s23, 0x20000")
    e(f"s_lshr_b32 s41, s{sW}, 1")
    e(f"s_and_b32 s42, s{sW}, 1")
    e("s_cmp_ge_u32 s2, 248\ns_cbranch_scc1 K0_misc")
    e("s_cmp_ge_u32 s2, 200\ns_cbranch_scc1 K0_t4")
    e("s_cmp_ge_u32 s2, 80\ns_cbranch_scc1 K0_t3")
    e("s_cmp_ge_u32 s2, 60\ns_cbranch_scc1 K0_t2")
    e("""s_mul_i32 s43, s2, 43
    s_lshr_b32 s43, s43, 7
    s_mul_i32 s49, s43, 3
    s_sub_u32 s49, s2, s49
    s_mov_b32 s20, s6
    s_mov_b32 s21, s7
    s_mov_b32 s22, 2457600
    s_mov_b32 s44, 3840
    s_mul_i32 s47, s49, 1280
    s_lshl_b32 s45, s43, 5
    s_lshl_b32 s50, s40, 3
    s_add_u32 s45, s45, s50
    s_mov_b32 s46, 4
    s_mov_b32 s48, 1
    s_branch K0_load""")
    e("K0_t2:")
    e("""s_sub_u32 s43, s2, 60
    s_mov_b32 s20, s8
    s_mov_b32 s21, s9
    s_mov_b32 s22, 819200
    s_mov_b32 s44, 1280
    s_mov_b32 s47, 0
    s_mov_b32 s48, 2
    s_mov_b32 s49, 0
    s_cmp_ge_u32 s43, 16
    s_cbranch_scc1 K0_t2x
    s_mul_i32 s45, s43, 40
    s_mul_i32 s50, s41, 20
    s_add_u32 s45, s45, s50
    s_lshl_b32 s50, s42, 3
    s_add_u32 s45, s45, s50
    s_mov_b32 s46, 4
    s_branch K0_load""")
    e("K0_t2x:")
    e("""s_sub_u32 s50, s43, 16
    s_lshl_b32 s50, s50, 3
    s_lshl_b32 s51, s42, 2
    s_add_u32 s50, s50, s51
    s_add_u32 s50, s50, s41
    s_mul_i32 s45, s50, 20
    s_add_u32 s45, s45, 16
    s_mov_b32 s46, 40
    s_branch K0_load""")
    e("K0_t3:")
    e("""s_sub_u32 s50, s2, 80
    s_cmp_ge_u32 s50, 60
    s_cselect_b32 s52, 1, 0
    s_cselect_b32 s20, s14, s12
    s_cselect_b32 s21, s15, s13
    s_cselect_b32 s51, 60, 0
    s_sub_u32 s50, s50, s51
    s_mul_i32 s43, s50, 43
    s_lshr_b32 s43, s43, 7
    s_mul_i32 s49, s43, 3
    s_sub_u32 s49, s50, s49
    s_mov_b32 s22, 1966080
    s_mov_b32 s44, 3072
    s_lshl_b32 s47, s49, 10
    s_lshl_b32 s45, s43, 5
    s_lshl_b32 s50, s40, 3
    s_add_u32 s45, s45, s50
    s_mov_b32 s46, 4
    s_mov_b32 s48, 3
    s_branch K0_load""")
    e("K0_t4:")
    e("""s_sub_u32 s43, s2, 200
    s_mov_b32 s20, s16
    s_mov_b32 s21, s17
    s_mov_b32 s22, 1966080
    s_mov_b32 s44, 1280
    s_mov_b32 s47, 0
    s_mov_b32 s48, 4
    s_mov_b32 s49, 0
    s_lshl_b32 s45, s43, 5
    s_lshl_b32 s50, s42, 1
    s_add_u32 s50, s50, s41
    s_lshl_b32 s50, s50, 3
    s_add_u32 s45, s45, s50
    s_mov_b32 s46, 4""")
    e("K0_load:")
    e.flush_hazards()
    e("""s_mul_i32 s53, s45, s44
    s_add_u32 s53, s53, s47
    s_mul_i32 s54, s46, s44
    s_add_u32 s54, s54, s53""")
    WD = 64
    e("s_mov_b32 s55, s53")
    for i in range(8):
        if i == 4: e("s_mov_b32 s55, s54")
        e(f"buffer_load_dwordx4 {vr(WD+4*i,4)}, v2, s[20:23], s55 offen")
        if i % 4 != 3: e("s_add_u32 s55, s55, s44")
    e("v_mul_lo_u32 v7, v3, s44")
    e("v_lshl_add_u32 v7, v4, 4, v7")
    e("v_add_u32 v7, 1024, v7")
    e("s_cmp_eq_u32 s48, 3\ns_cbranch_scc1 K0_nob")
    e.raw(f"buffer_load_dwordx4 {vr(WD+32,4)}, v7, s[20:23], s53 offen")
    e.raw(f"buffer_load_dwordx4 {vr(WD+36,4)}, v7, s[20:23], s54 offen")
    e("K0_nob:")
    e("s_branch K0_x")
    e("K0_misc:")
    e.flush_hazards()
    e("s_mov_b32 s48, 0")
    e("s_cmp_lg_u32 s2, 248\ns_cbranch_scc1 K0_warm")
    e("v_mov_b32 v64, 0\nv_mov_b32 v65, 0\nv_mov_b32 v66, 0\nv_mov_b32 v67, 0")
    e(f"s_lshl_b32 s55, s{sW}, 13\ns_add_u32 s55, s55, {L.FL}")
    for i in range(8):
        e.raw(f"buffer_store_dwordx4 v[64:67], v2, s[28:31], s55 offen offset:{(i%4)*1024}{SM}")
        if i == 3: e.raw("s_add_u32 s55, s55, 4096")
    e("s_branch K0_x")
    e("K0_warm:")
    if warm_label:
        per = (warm_bytes + 27) // 28 // 1024 * 1024 + 1024
        e.raw("s_getpc_b64 s[56:57]")
        e.raw("K0_pc:")
        e.raw(f"s_add_u32 s56, s56, {warm_label}-K0_pc")
        e.raw("s_addc_u32 s57, s57, 0")
        e.raw(f"s_sub_u32 s55, s2, 249\ns_lshl_b32 s55, s55, 2\ns_add_u32 s55, s55, s{sW}\ns_mul_i32 s55, s55, {per}")
        e.raw(f"v_add_u32 v8, s55, v2")
        for i in range(per // 1024):
            e.raw(f"v_min_u32 v9, {warm_bytes-16}, v8")
            e.raw(f"global_load_dwordx4 v[64:67], v9, s[56:57]")
            e.raw("v_add_u32 v8, 1024, v8")
    e("K0_x:")
    e.flush_hazards()
    e.vm_seq = 10; e.vm_done = 0
    e("""s_lshr_b32 s56, s2, 1
    s_and_b32 s57, s2, 1
    s_lshl_b32 s58, s56, 4
    v_add_u32 v8, s58, v4
    v_and_b32 v9, 1023, v8
    v_lshrrev_b32 v8, 10, v8
    v_lshl_add_u32 v8, v9, 1, v8
    s_movk_i32 s58, 1280
    v_mul_lo_u32 v8, v8, s58
    v_lshl_add_u32 v8, v3, 3, v8
    s_mul_i32 s59, s57, 10
    s_add_u32 s59, s59, s40
    s_lshl_b32 s60, s59, 6""")
    XD = 16
    for i in range(2):
        e.raw(f"buffer_load_dwordx2 {vr(XD+4*i,2)}, v8, s[24:27], s60 offen offset:{256*i}")
        e.raw(f"buffer_load_dwordx2 {vr(XD+4*i+2,2)}, v8, s[24:27], s60 offen offset:{256*i+32}")
    for i in range(4): e(f"v_mov_b32 v{XD+8+i}, 0")
    e(f"s_cmp_ge_u32 s{sW}, 2\ns_cbranch_scc1 K0_x2")
    e.raw(f"buffer_load_dwordx2 {vr(XD+8,2)}, v8, s[24:27], s60 offen offset:512")
    e.raw(f"buffer_load_dwordx2 {vr(XD+10,2)}, v8, s[24:27], s60 offen offset:544")
    e("K0_x2:")
    e(f"s_mul_i32 s61, s{sW}, {8*RS}")
    e("v_add_u32 v10, s61, v2")
    e(f"s_movk_i32 s58, {RS}")
    e("v_mul_lo_u32 v11, v3, s58")
    e("v_lshl_add_u32 v11, v4, 4, v11")
    e("v_add_u32 v11, s61, v11")
    e("v_add_u32 v11, 1024, v11")
    e("v_mov_b32 v60, 0x3f803f80\nv_mov_b32 v61, v60\nv_mov_b32 v62, v60\nv_mov_b32 v63, v60")
    if dbg: e.raw("s_memrealtime s[90:91]")
    e.force_wait("s_waitcnt vmcnt(0)", vm=True)
    if dbg: e.raw("s_memrealtime s[92:93]")
    e("s_cmp_eq_u32 s48, 0\ns_cbranch_scc1 K0_nolds")
    for i in range(8): e(f"ds_write_b128 v10, {vr(WD+4*i,4)} offset:{i*RS}")
    e(f"ds_write_b128 v11, {vr(WD+32,4)}")
    e(f"ds_write_b128 v11, {vr(WD+36,4)} offset:{4*RS}")
    e("K0_nolds:")
    e.flush_hazards()
    e(f"s_mul_i32 s61, s56, 20480\ns_lshl_b32 s62, s59, 10\ns_add_u32 s61, s61, s62\ns_add_u32 s61, s61, {L.XA[0]}")
    e(f"buffer_store_dwordx4 {vr(XD,4)}, v2, s[28:31], s61 offen{SM}")
    e("s_add_u32 s61, s61, 4096")
    e(f"buffer_store_dwordx4 {vr(XD+4,4)}, v2, s[28:31], s61 offen{SM}")
    e("s_add_u32 s61, s61, 4096")
    e(f"s_cmp_ge_u32 s{sW}, 2\ns_cbranch_scc1 K0_x3")
    e.raw(f"buffer_store_dwordx4 {vr(XD+8,4)}, v2, s[28:31], s61 offen{SM}")
    e("K0_x3:")
    e("v_mov_b32 v12, 0\nv_mov_b32 v13, 0")
    for i in range(12):
        e(f"v_dot2_f32_bf16 v12, v{XD+i}, v60, v12")
        e(f"v_dot2_f32_bf16 v13, v{XD+i}, v{XD+i}, v13")
    e("""v_permlane16_swap_b32 v12, v13
    v_add_f32 v12, v12, v13
    v_mov_b32 v13, v12
    v_permlane32_swap_b32 v12, v13
    v_add_f32 v12, v12, v13
    v_mov_b32 v13, v12
    v_permlane16_swap_b32 v12, v13""")
    e(f"""s_lshl_b32 s61, s56, 10
    s_lshl_b32 s62, s57, 1
    s_add_u32 s62, s62, s41
    s_lshl_b32 s62, s62, 8
    s_add_u32 s61, s61, s62
    s_lshl_b32 s62, s42, 3
    s_add_u32 s61, s61, s62
    s_add_u32 s61, s61, {L.ST[0]}
    s_mov_b32 exec_lo, 0xffff
    s_mov_b32 exec_hi, 0""")
    e(f"buffer_store_dwordx2 v[12:13], v2, s[28:31], s61 offen{SM}")
    e("s_mov_b64 exec, -1")
    e.force_wait("s_waitcnt lgkmcnt(0)", ds=True)
    e.barrier()
    e("s_cmp_eq_u32 s48, 0\ns_cbranch_scc1 K0_end")
    e("s_cmp_eq_u32 s48, 3\ns_cbranch_scc1 K0_b3")
    e(f"""v_lshl_add_u32 v14, v3, 2, v5
    v_mul_lo_u32 v14, v14, s58
    s_mul_i32 s61, s{sW}, 320
    v_add_u32 v15, s61, v14
    v_lshl_add_u32 v14, v6, 3, v15""")
    e("s_cmp_eq_u32 s48, 1\ns_cbranch_scc1 K0_b1")
    FR = 64
    e(f"""s_cmp_eq_u32 s48, 2
    s_mov_b32 s62, {48*5120}
    s_mov_b32 s63, {L.W4}
    s_cselect_b32 s62, {20*5120}, s62
    s_cselect_b32 s63, {L.W2}, s63
    s_lshl_b32 s64, s{sW}, 1
    s_mul_i32 s64, s64, s62
    s_add_u32 s63, s63, s64
    s_mul_i32 s64, s43, 5120
    s_add_u32 s63, s63, s64""")
    for i in range(10):
        e(f"ds_read_b64_tr_b16 {vr(FR+4*i,2)}, v14 offset:{32*i}")
        e(f"ds_read_b64_tr_b16 {vr(FR+4*i+2,2)}, v14 offset:{32*i+16*RS}")
    e("s_add_u32 s64, s63, 4096")
    for i in range(10):
        if i == 5: e("s_add_u32 s63, s63, s62\ns_add_u32 s64, s63, 4096")
        t = i if i < 5 else (i - 5 + 4) % 5
        if t < 4: e(f"buffer_store_dwordx4 {vr(FR+4*i,4)}, v2, s[28:31], s63 offen offset:{t*1024}{SM}")
        else: e(f"buffer_store_dwordx4 {vr(FR+4*i,4)}, v2, s[28:31], s64 offen{SM}")
    e("s_endpgm")
    e("K0_b1:")
    e.flush_hazards(); e.ds_done = e.ds_seq; e.pend_ds = {}
    MSTR = 20 * 8192
    e(f"""v_lshrrev_b32 v16, 1, v6
    v_mul_u32_u24 v16, 80, v16
    v_and_b32 v17, 1, v6
    v_mul_u32_u24 v17, 40, v17
    v_add3_u32 v15, v15, v16, v17""")
    for i in range(8):
        off = 80 * (i >> 1) + 40 * (i & 1)
        e(f"ds_read_b64_tr_b16 {vr(FR+4*i,2)}, v14 offset:{off}")
        e(f"ds_read_b64_tr_b16 {vr(FR+4*i+2,2)}, v14 offset:{off+16*RS}")
    for u in range(2):
        e(f"ds_read_b64_tr_b16 {vr(FR+32+4*u,2)}, v15 offset:{160*u+32}")
        e(f"ds_read_b64_tr_b16 {vr(FR+32+4*u+2,2)}, v15 offset:{160*u+32+16*RS}")
    e(f"""s_cmp_eq_u32 s49, 1
    s_cselect_b32 s61, 2, 0
    s_cselect_b32 s66, 8, 0
    s_cmp_eq_u32 s49, 2
    s_cselect_b32 s61, 5, s61
    s_cselect_b32 s62, 7, 4
    s_lshl_b32 s63, s{sW}, 2
    s_mul_i32 s64, s63, {MSTR}
    s_lshl_b32 s65, s43, 13
    s_add_u32 s64, s64, s65
    s_add_u32 s64, s64, {L.W1}
    s_lshl_b32 s65, s61, 10
    s_add_u32 s65, s65, s64
    s_lshl_b32 s67, s62, 10
    s_add_u32 s67, s67, s64
    s_lshl_b32 s68, s66, 4
    s_add_u32 s67, s67, s68
    v_lshrrev_b32 v16, 3, v4
    s_mov_b32 s68, {MSTR}
    v_mul_lo_u32 v17, v16, s68
    v_and_b32 v18, 7, v4
    v_lshl_add_u32 v19, v3, 4, v18
    v_lshl_add_u32 v17, v19, 4, v17
    s_mul_i32 s69, s63, 25600
    s_mul_i32 s70, s43, 1280
    s_add_u32 s69, s69, s70
    s_add_u32 s69, s69, {L.CSP}
    s_lshl_b32 s70, s61, 6
    s_add_u32 s70, s70, s69
    s_lshl_b32 s71, s62, 4
    s_add_u32 s71, s71, s66
    s_lshl_b32 s71, s71, 2
    s_add_u32 s71, s71, s69
    v_mul_u32_u24 v16, 25600, v16
    v_lshl_add_u32 v16, v18, 2, v16
    v_lshlrev_b32 v18, 2, v4""")
    CS = 112
    for i in range(8):
        e(f"buffer_store_dwordx4 {vr(FR+4*i,4)}, v2, s[28:31], s65 offen offset:{(i&1)*1024}{SM}")
        e(f"v_mfma_f32_16x16x32_bf16 {vr(CS+4*i,4)}, v[60:63], {vr(FR+4*i,4)}, 0")
        if i & 1: e(f"s_add_u32 s65, s65, {MSTR}")
    for u in range(2):
        e(f"buffer_store_dwordx4 {vr(FR+32+4*u,4)}, v17, s[28:31], s67 offen{SM}")
        e(f"v_mfma_f32_16x16x32_bf16 {vr(CS+32+4*u,4)}, v[60:63], {vr(FR+32+4*u,4)}, 0")
        e(f"s_add_u32 s67, s67, {2*MSTR}")
    e("s_mov_b32 exec_lo, 0xffff\ns_mov_b32 exec_hi, 0")
    for i in range(8):
        e(f"buffer_store_dword v{CS+4*i}, v18, s[28:31], s70 offen offset:{(i&1)*64}{SM}")
        if i & 1: e(f"s_add_u32 s70, s70, 25600")
    for u in range(2):
        e(f"buffer_store_dword v{CS+32+4*u}, v16, s[28:31], s71 offen{SM}")
        e(f"s_add_u32 s71, s71, 51200")
    if dbg:
        e.raw("""s_waitcnt vmcnt(0)
s_memrealtime s[82:83]
s_mov_b32 s86, 256
s_mov_b32 s87, 0x20000
s_waitcnt lgkmcnt(0)
s_add_u32 s88, s2, s40
s_cmp_lg_u32 s88, 0
s_cbranch_scc1 K0_end
v_mov_b32 v20, s80
v_mov_b32 v21, s82
v_mov_b32 v22, s90
v_mov_b32 v23, s92
s_mov_b64 exec, 1
s_mov_b32 s88, 0x2650000
buffer_store_dwordx4 v[20:23], off, s[28:31], s88""")
    e("s_endpgm")
    e("K0_b3:")
    e.flush_hazards(); e.ds_done = e.ds_seq; e.pend_ds = {}
    e(f"""v_lshrrev_b32 v14, 1, v3
    v_lshl_add_u32 v14, v14, 2, v5
    v_mul_lo_u32 v14, v14, s58
    v_and_b32 v15, 1, v3
    v_lshl_add_u32 v14, v15, 5, v14
    v_lshl_add_u32 v14, v6, 3, v14
    s_lshl_b32 s61, s{sW}, 8
    v_add_u32 v14, s61, v14""")
    for tl in range(4):
        for ee in range(2):
            i = tl * 2 + ee
            off = 64 * tl + ee * 8 * RS
            e(f"ds_read_b64_tr_b16 {vr(FR+4*i,2)}, v14 offset:{off}")
            e(f"ds_read_b64_tr_b16 {vr(FR+4*i+2,2)}, v14 offset:{off+16*RS}")
    e(f"""s_lshl_b32 s61, s49, 4
    s_lshl_b32 s62, s{sW}, 2
    s_add_u32 s61, s61, s62
    s_mul_i32 s65, s43, 12288
    s_add_u32 s65, s65, {L.W3}
    s_mul_i32 s66, s43, 1280
    s_add_u32 s66, s66, {L.CSP+512}
    v_lshlrev_b32 v18, 2, v0""")
    CS = 112
    for tl in range(4):
        e(f"""s_mul_i32 s62, s61, 43
        s_lshr_b32 s62, s62, 7
        s_mul_i32 s63, s62, 3
        s_sub_u32 s63, s61, s63
        s_lshl_b32 s63, s63, 1
        s_add_u32 s63, s63, s52
        s_mul_i32 s64, s62, 245760
        s_add_u32 s64, s64, s65
        s_lshl_b32 s67, s63, 10
        s_add_u32 s64, s64, s67
        s_add_u32 s67, s64, 6144
        s_mul_i32 s62, s62, 25600
        s_lshl_b32 s63, s63, 7
        s_add_u32 s62, s62, s63
        s_add_u32 s{72+tl}, s62, s66
        s_add_u32 s61, s61, 1""")
        e(f"buffer_store_dwordx4 {vr(FR+8*tl,4)}, v2, s[28:31], s64 offen{SM}")
        e(f"v_mfma_f32_32x32x16_bf16 {vr(CS+16*tl,16)}, v[60:63], {vr(FR+8*tl,4)}, 0")
        e(f"buffer_store_dwordx4 {vr(FR+8*tl+4,4)}, v2, s[28:31], s67 offen{SM}")
        e(f"v_mfma_f32_32x32x16_bf16 {vr(CS+16*tl,16)}, v[60:63], {vr(FR+8*tl+4,4)}, {vr(CS+16*tl,16)}")
    e("s_mov_b32 exec_hi, 0")
    for tl in range(4):
        e(f"buffer_store_dword v{CS+16*tl}, v18, s[28:31], s{72+tl} offen{SM}")
    e("K0_end:")
    e("s_endpgm")
    return e

if __name__ == "__main__":
    from asmlib import wrap, NAME
    e = gen_k0()
    open("k0_only.s", "w").write(wrap([dict(name="prep_kernel", body=e.text(), grid=256, block=256, lds=32*RS, vgpr=176, accum=176)]))
    print(e.stat, e.log_nops)
```

```python
from emit import *
import layout as L
import struct

def f2u(x): return struct.unpack("<I", struct.pack("<f", x))[0]
LOG2E = 1.4426950408889634
KB = 1024
CS_OFF = 156 * KB
STB_OFF = CS_OFF + 1280
HALO_OFF = 136 * KB
XB_OFF = 136 * KB
W2_OFF = 24 * KB
PART_OFF = 96 * KB
WS = "s[4:7]"; OUT = "s[8:11]"
sW, sG, sM, sLOC = 12, 13, 14, 15
sAX, sHAL0, sW1, sW3, sW2, sW4 = 16, 17, 18, 19, 20, 21
sA2, sA4 = 22, 26
sXA, sXB, sSTO, sSTI, sSTH0, sHAL1, sSTH1, sOM, sOX, sH, sFL, sFLP = 30, 31, 32, 33, 34, 35, 36, 37, 38, 39, 40, 41
sM2, sM3, sM1, sBUD, sOA, sOB = 42, 43, 44, 45, 46, 47
sT = 48
mG0, mG1, mLT2, mC8, mH1, mODD = 56, 58, 60, 62, 64, 66
sFIRST, sHW = 68, 69
sSTAMP = 70
vL16, vL16B, vA3, vLDS1, vLDS2, vHK = 0, 1, 2, 4, 5, 6
vPOLL, vONE, vOX, vHS, vST3 = 9, 10, 11, 12, 13
vXP = 246

class Obj:
    def __init__(s, name, off, size, private=False):
        s.name, s.off, s.size, s.private = name, off, size, private
        s.vm = 0; s.dsw = 0; s.landed = None; s.lastread = 0; s.done = False; s.released = None

class Main:
    def __init__(self, stamps=False, stop=None, cfg=None):
        self.e = Em(); self.objs = []; self.stamps = stamps; self.nstamp = 0; self.stop = stop
        self.stamp_names = []
        self.cfg = cfg or {}
        self.streams = {}
    def alloc(self, name, off, size, private=False):
        for o in self.objs:
            if o.off < off + size and off < o.off + o.size:
                assert o.released is not None, f"LDS WAR: {name} over live {o.name}"
        self.objs = [o for o in self.objs if not (o.off < off + size and off < o.off + o.size and o.off >= off and o.off + o.size <= off + size)]
        o = Obj(name, off, size, private); self.objs.append(o); return o
    def barrier(self):
        e = self.e; e.barrier()
        for o in self.objs:
            if o.landed is None and o.vm <= e.vm_done and o.dsw <= e.ds_done: o.landed = e.barriers
            if o.done and o.released is None and o.lastread <= e.ds_done: o.released = e.barriers
    def lds(self, off, bases=(vL16, vLDS1, vLDS2)):
        return f"v{bases[off >> 16]} offset:{off & 0xffff}"
    def rd(self, o, dst, off, n=4, bases=(vL16, vLDS1, vLDS2), last=False):
        e = self.e
        if o.private: e.wait(vm=o.vm, ds=o.dsw if o.dsw else None)
        else: assert o.landed is not None, f"LDS RAW: {o.name} not landed"
        op = {4: "ds_read_b128", 2: "ds_read_b64", 1: "ds_read_b32"}[n]
        t = e(f"{op} {vr(dst, n)}, {self.lds(o.off + off, bases)}")
        o.lastread = t
        if last: o.done = True
        return t
    def soff(self, key, reg, base, const):
        cur = self.streams.get(key)
        if cur and cur[0] == base and 0 <= const - cur[1] <= 4095 - 15:
            return reg, const - cur[1]
        self.e(f"s_add_u32 s{reg}, s{base}, {const}")
        self.streams[key] = (base, const)
        return reg, 0
    def stamp(self, name):
        if not self.stamps: return
        r = sSTAMP + 2 * (self.nstamp % 4)
        if self.nstamp >= 4: self.e(f"v_writelane_b32 v15, s{r}, {self.nstamp-4}")
        self.e(f"s_memtime s[{r}:{r+1}]"); self.nstamp += 1; self.stamp_names.append(name)
    def dma_chunk(self, name, ldsoff, nblk, mreg, base, gconst, key="w", mod=""):
        st = {}
        def mk(p):
            def f():
                e = self.e
                if p == 0:
                    st["o"] = self.alloc(name, ldsoff, 4 * nblk * KB); self.named[name] = st["o"]
                if self.m0_owner != name:
                    e(f"s_add_u32 m0, s{mreg}, {ldsoff}")
                    e(f"s_add_u32 s{sT+1}, s{base}, {gconst}")
                self.m0_owner = name
                st["o"].vm = e(f"buffer_load_dwordx4 v{vL16}, {WS}, s{sT+1} offen offset:{p*1024}{mod} lds")
            return f
        return [mk(p) for p in range(nblk)]
    def w1_chunk(self, l, c):
        slot = c if c < 17 else c - 17
        return self.dma_chunk(f"w1_{l}_{c}", slot * 8 * KB, 2, sM2, sW1, c * 8192)
    W3SLOT = {**{c: c for c in range(13)}, 13: 0, 14: 1, 15: 2, 16: 8, 17: 9, 18: 10, 19: 11}
    def w3_chunk(self, l, c):
        return self.dma_chunk(f"w3_{l}_{c}", self.W3SLOT[c] * 12 * KB, 3, sM3, sW3, c * 12288)
    def w2_block(self, l, b):
        it = self.dma_chunk(f"w2_{l}_{b}", W2_OFF + b * 4 * KB, 1, sM1, sW2, b * 1024)
        def f():
            it[0](); self.named[f"w2_{l}_{b}"].private = True
        return [f]
    def halo_block(self, l, i):
        return self.dma_chunk(f"ha_{l}_{i}", HALO_OFF + i * 4 * KB, 1, sM1, sHAL0 if l == 0 else sHAL1, i * 4096, mod=" sc1")
    def w4_load(self, n):
        def f():
            r, imm = self.soff("w4", sT + 2, sW4, n * 1024)
            self.e(f"buffer_load_dwordx4 {ar(4*n,4)}, v{vL16}, {WS}, s{r} offen offset:{imm}")
        return [f]
    def loop(self, mf, pre, post):
        for i, m in enumerate(mf):
            for f in pre.get(i, []): f() if callable(f) else self.e(f)
            self.e(m)
            for f in post.get(i, []): f() if callable(f) else self.e(f)
    def signal(self, slot):
        e = self.e
        e.wait_all(vm=True, ds=True)
        self.barrier()
        lab = e.label("SG"); lab2 = e.label("SG")
        e(f"s_cmp_lg_u32 s{sW}, 0\ns_cbranch_scc1 {lab}")
        e(f"s_lshl_b32 s{sT}, s{sM}, 2\ns_add_u32 s{sT}, s{sT}, s{sFL}\ns_add_u32 s{sT}, s{sT}, {slot*2048}")
        e("s_mov_b64 exec, 1")
        e(f"s_cmp_eq_u32 s{sLOC}, 0\ns_cbranch_scc1 {lab2}")
        e.raw(f"buffer_store_dword v{vONE}, off, {WS}, s{sT}")
        e("s_mov_b64 exec, -1")
        e(f"s_branch {lab}")
        e.place(lab2)
        e.raw("buffer_wbl2 sc1\ns_waitcnt vmcnt(0)")
        e.raw(f"buffer_store_dword v{vONE}, off, {WS}, s{sT} sc1")
        e("s_mov_b64 exec, -1")
        e.place(lab)
        self.streams = {}
    def poll(self, sreg, const, voff, tmp, acquire=True):
        e = self.e
        assert e.vm_done == e.vm_seq
        top = e.label("PL"); done = e.label("PL")
        e(f"s_add_u32 s{sT}, s{sreg}, {const}")
        e.place(top)
        e.raw(f"buffer_load_dword v{tmp}, v{voff}, {WS}, s{sT} offen sc1")
        e.raw("s_waitcnt vmcnt(0)")
        e.raw(f"v_cmp_eq_u32 vcc, 0, v{tmp}")
        e.raw("s_nop 1")
        e.raw("s_cmp_eq_u64 vcc, 0")
        e.raw(f"s_cbranch_scc1 {done}")
        e.raw(f"s_sub_u32 s{sBUD}, s{sBUD}, 1")
        e.raw(f"s_cbranch_scc0 {top}")
        e.raw(f"s_mov_b32 s{sBUD}, 0")
        e.place(done)
        if acquire:
            lab = e.label("PL")
            e.raw(f"s_cmp_lg_u32 s{sLOC}, 0\ns_cbranch_scc1 {lab}\nbuffer_inv sc1\ns_waitcnt vmcnt(0)")
            e.place(lab)
        e.flush_hazards()
    def finish(self):
        e = self.e
        if self.stamps:
            self.stamp("end")
            e("s_memrealtime s[82:83]")
            e.force_wait("s_waitcnt vmcnt(0) lgkmcnt(0)", vm=True, ds=True)
            e("s_sub_u32 s82, s82, s80\nv_mov_b32 v22, s82\nv_mov_b32 v23, s80")
            e(f"s_lshl_b32 s{sT}, s2, 2\ns_add_u32 s{sT}, s{sT}, s{sW}\ns_lshl_b32 s{sT}, s{sT}, 7\ns_add_u32 s{sT}, s{sT}, {L.DBG}")
            for i in range(self.nstamp - 4, self.nstamp): e(f"v_writelane_b32 v15, s{sSTAMP+2*(i%4)}, {i}")
            e(f"v_lshrrev_b32 v20, 2, v{vL16}")
            e("s_mov_b32 exec_hi, 0")
            e(f"buffer_store_dword v15, v20, {WS}, s{sT} offen")
            e(f"s_lshl_b32 s{sT}, s2, 3\ns_add_u32 s{sT}, s{sT}, {L.DBG+0x40000}\ns_mov_b64 exec, 1")
            e(f"buffer_store_dwordx2 v[22:23], off, {WS}, s{sT}")
            if self.cfg.get("hdbg"):
                e.raw(f"""s_load_dwordx2 s[84:85], s[0:1], 64
s_mov_b32 s86, 256
s_mov_b32 s87, 0x20000
s_waitcnt lgkmcnt(0)
s_sub_u32 s84, s84, 512
s_subb_u32 s85, s85, 0
s_add_u32 s88, s2, s{sW}
s_cmp_lg_u32 s88, 0
s_cbranch_scc1 M_fin
buffer_store_dwordx2 v[22:23], off, s[84:87], 0 offset:16
v_readlane_b32 s88, v15, 0
s_mov_b64 exec, -1
v_subrev_u32 v15, s88, v15
v_lshrrev_b32 v21, 4, v0
v_and_b32 v22, 3, v21
v_cmp_eq_u32 vcc, 1, v22
s_and_saveexec_b64 s[90:91], vcc
v_lshrrev_b32 v21, 2, v21
v_lshlrev_b32 v21, 2, v21
s_mov_b32 exec_hi, 0
buffer_store_dword v15, v21, s[84:87], 0 offen offset:24
M_fin:""")
        e("s_endpgm")

    def stats16(self, q, dst):
        e = self.e
        e(f"v_pk_add_f32 {vr(q,2)}, {vr(q,2)}, {vr(q+2,2)}")
        e(f"v_permlane16_swap_b32 v{q}, v{q+1}")
        e(f"v_add_f32 v{q}, v{q}, v{q+1}")
        e(f"v_mov_b32 v{q+1}, v{q}")
        e(f"v_permlane32_swap_b32 v{q}, v{q+1}")
        e(f"v_add_f32 v{q}, v{q}, v{q+1}")
        e(f"v_mov_b32 v{q+1}, v{q}")
        e(f"v_permlane16_swap_b32 v{q}, v{q+1}")
        self.stats_fin(q, dst)
    def stats_fin(self, q, dst):
        e = self.e
        e(f"v_mul_f32 v{dst}, 0x{f2u(1/640):x}, v{q}")
        e(f"v_mul_f32 v{q+1}, 0x{f2u(1/640):x}, v{q+1}")
        e(f"v_fma_f32 v{q+1}, -v{dst}, v{dst}, v{q+1}")
        e(f"v_max_f32 v{q+1}, 0, v{q+1}")
        e(f"v_add_f32 v{q+1}, 0x{f2u(1e-5):x}, v{q+1}")
        e(f"v_rsq_f32 v{dst+1}, v{q+1}")

    def prologue(self):
        e = self.e
        self.named = {}; self.m0_owner = None; self.t1_owner = None
        e("s_cmp_lt_u32 s2, 256\ns_cbranch_scc1 M_go\ns_endpgm")
        e.place("M_go")
        e("s_load_dwordx2 s[4:5], s[0:1], 72")
        e("s_load_dwordx2 s[8:9], s[0:1], 56")
        self.stamp("start")
        if self.stamps: e("s_memrealtime s[80:81]")
        e(f"""v_lshrrev_b32 v1, 6, v0
        v_readfirstlane_b32 s{sW}, v1
        v_and_b32 v3, 63, v0
        v_lshlrev_b32 v{vL16}, 4, v3
        v_add_u32 v{vL16B}, 20480, v{vL16}
        v_add_u32 v{vLDS1}, 0x10000, v{vL16}
        v_add_u32 v{vLDS2}, 0x20000, v{vL16}
        s_and_b32 s48, s2, 7
        s_lshr_b32 s49, s2, 3
        s_lshr_b32 s50, s49, 4
        s_lshl_b32 s48, s48, 1
        s_add_u32 s{sG}, s48, s50
        s_and_b32 s{sM}, s49, 15
        s_mov_b32 s6, {L.WS_USED}
        s_mov_b32 s7, 0x20000
        s_mov_b32 s10, 2621440
        s_mov_b32 s11, 0x20000
        s_mov_b32 s{sBUD}, 0x20000
        s_lshl_b32 s48, s{sG}, 3
        s_lshl_b32 s49, s{sW}, 1
        s_add_u32 s49, s49, s48
        s_mul_i32 s{sAX}, s49, 20480
        s_lshl_b32 s{sSTI}, s49, 10
        s_mul_i32 s{sH}, s49, 49152
        s_mul_i32 s50, s{sM}, 3072
        s_add_u32 s{sH}, s{sH}, s50
        s_lshl_b32 s50, s{sM}, 10
        s_add_u32 s{sOM}, s{sAX}, s50
        s_lshr_b32 s50, s{sM}, 2
        s_add_u32 s50, s50, 16
        s_lshl_b32 s50, s50, 10
        s_and_b32 s51, s{sM}, 3
        s_lshl_b32 s51, s51, 8
        s_add_u32 s50, s50, s51
        s_add_u32 s{sOX}, s{sAX}, s50
        s_lshl_b32 s{sM1}, s{sW}, 10
        s_lshl_b32 s{sM2}, s{sW}, 11
        s_mul_i32 s{sM3}, s{sW}, 3072
        s_mul_i32 s{sW1}, s{sM}, 163840
        s_add_u32 s{sW1}, s{sW1}, s{sM2}
        s_add_u32 s{sW1}, s{sW1}, {L.W1}
        s_mul_i32 s{sW3}, s{sM}, 245760
        s_add_u32 s{sW3}, s{sW3}, s{sM3}
        s_add_u32 s{sW3}, s{sW3}, {L.W3}
        s_and_b32 s52, s{sM}, 7
        s_lshr_b32 s53, s{sM}, 3
        s_mul_i32 s{sW2}, s52, 102400
        s_mul_i32 s50, s{sW}, 25600
        s_add_u32 s{sW2}, s{sW2}, s50
        s_add_u32 s{sW2}, s{sW2}, {L.W2}
        s_mul_i32 s{sW4}, s52, 245760
        s_mul_i32 s50, s{sW}, 61440
        s_add_u32 s{sW4}, s{sW4}, s50
        s_add_u32 s{sW4}, s{sW4}, {L.W4}
        s_lshl_b32 s{sFL}, s{sG}, 7
        s_add_u32 s{sFL}, s{sFL}, {L.FL}
        s_and_b32 s50, s{sG}, 7
        s_cmp_eq_u32 s50, 0
        s_cselect_b32 s54, 0, 1
        s_sub_u32 s50, s48, s54
        s_mul_i32 s{sHAL0}, s50, 20480
        s_add_u32 s{sHAL0}, s{sHAL0}, s{sM1}
        s_lshl_b32 s{sSTH0}, s50, 10
        s_add_u32 s{sSTH0}, s{sSTH0}, {L.ST[0]}
        s_sub_u32 s50, s{sG}, s54
        s_mul_i32 s{sHAL1}, s50, 20480
        s_add_u32 s{sHAL1}, s{sHAL1}, s{sM1}
        s_add_u32 s{sHAL1}, s{sHAL1}, {L.HX}
        s_lshl_b32 s{sSTH1}, s50, 10
        s_add_u32 s{sSTH1}, s{sSTH1}, {L.HST}
        s_lshl_b32 s{sFLP}, s50, 7
        s_add_u32 s{sFLP}, s{sFLP}, {L.FL + 8*2048}
        s_add_u32 s50, s54, s{sW}
        s_cmp_eq_u32 s50, 0
        s_cselect_b32 s{sFIRST}, 1, 0
        s_lshl_b32 s50, s53, 2
        s_add_u32 s48, s48, s50
        s_add_u32 s50, s50, s{sW}
        s_cmp_eq_u32 s50, 7
        s_cselect_b32 s{sHW}, 1, 0""")
        for t in range(4):
            e(f"""s_add_u32 s50, s{sW}, {1+t}
            s_and_b32 s50, s50, 3
            s_add_u32 s50, s50, s48
            s_mul_i32 s{sA2+t}, s50, 20480
            s_mul_i32 s51, s{sW}, 5120
            s_add_u32 s{sA2+t}, s{sA2+t}, s51
            s_mul_i32 s{sA4+t}, s50, 49152
            s_mul_i32 s51, s{sW}, 12288
            s_add_u32 s{sA4+t}, s{sA4+t}, s51""")
        e(f"""s_add_u32 s48, s48, s{sW}
        s_lshr_b32 s50, s52, 1
        s_and_b32 s51, s52, 1
        s_lshl_b32 s{sSTO}, s48, 10
        s_lshl_b32 s53, s50, 8
        s_add_u32 s{sSTO}, s{sSTO}, s53
        s_lshl_b32 s53, s51, 3
        s_add_u32 s{sSTO}, s{sSTO}, s53
        s_mul_i32 s{sXB}, s48, 20480
        s_mul_i32 s50, s50, 5120
        s_add_u32 s{sXB}, s{sXB}, s50
        s_mul_i32 s50, s51, 3072
        s_add_u32 s{sXA}, s{sXB}, s50
        s_add_u32 s{sXB}, s{sXB}, 2048
        s_add_u32 s{sXB}, s{sXB}, s53
        s_and_b32 s50, s48, 63
        s_lshl_b32 s50, s50, 5
        s_lshr_b32 s53, s48, 6
        s_add_u32 s50, s50, s53
        s_mul_i32 s50, s50, 1280
        s_mul_i32 s53, s52, 160
        s_add_u32 s50, s50, s53
        s_lshl_b32 s53, s51, 5
        s_add_u32 s{sOA}, s50, s53
        s_cmp_eq_u32 s51, 0
        s_cselect_b32 s53, 128, 0
        s_add_u32 s{sOB}, s50, s53""")
        e(f"""v_lshrrev_b32 v14, 4, v3
        v_and_b32 v15, 15, v3
        v_lshlrev_b32 v{vPOLL}, 2, v15
        v_mov_b32 v{vONE}, 1
        v_lshlrev_b32 v{vOX}, 4, v15
        v_lshl_add_u32 v{vOX}, v14, 3, v{vOX}
        v_cmp_eq_u32 s[{mG0}:{mG0+1}], 0, v14
        v_cmp_eq_u32 s[{mG1}:{mG1+1}], 1, v14
        v_cmp_gt_u32 s[{mLT2}:{mLT2+1}], 2, v14
        v_cmp_lt_u32 s[{mC8}:{mC8+1}], 7, v15
        v_and_b32 v16, 1, v14
        v_cmp_eq_u32 s[{mODD}:{mODD+1}], 1, v16
        s_min_u32 s50, s{sW}, 2
        s_add_u32 s50, s50, 2
        s_lshl_b32 s50, s50, 10
        v_add_u32 v{vHK}, s50, v{vL16}
        v_add_u32 v{vHK+1}, s50, v{vLDS1}
        v_add_u32 v{vHK+2}, s50, v{vLDS2}
        s_cmp_ge_u32 s{sW}, 2
        s_cselect_b64 s[{mH1}:{mH1+1}], s[{mC8}:{mC8+1}], 0
        v_lshrrev_b32 v17, 1, v14
        v_lshlrev_b32 v17, 8, v17
        v_lshl_add_u32 v17, v15, 4, v17
        s_movk_i32 s50, 20480
        v_mad_u32_u24 v{vA3}, v16, s50, v17
        s_mov_b32 s50, 49152
        v_mad_u32_u24 v{vHS}, v16, s50, v17
        v_lshl_add_u32 v{vST3}, v16, 10, v17
        v_lshrrev_b32 v18, 1, v14
        v_lshl_add_u32 v{vST3}, v18, 8, v{vST3}""")
        if self.cfg.get("fine"): self.stamp("scal")
        e(f"s_getreg_b32 s50, hwreg(HW_REG_XCC_ID)\ns_and_b32 s50, s50, 15\ns_or_b32 s50, s50, 0x100\nv_mov_b32 v16, s50")
        e(f"s_lshl_b32 s51, s{sM}, 2\ns_add_u32 s51, s51, s{sFL}\ns_add_u32 s51, s51, {15*2048}")
        e("s_mov_b64 exec, 1")
        e(f"buffer_store_dword v16, off, {WS}, s51 sc1")
        e("s_mov_b64 exec, -1")
        e(f"""s_mul_i32 s50, s{sM}, 25600
        s_add_u32 s50, s50, {L.CSP}
        s_lshl_b32 s51, s{sW}, 8
        s_add_u32 s51, s51, s50
        s_add_u32 s50, s50, 1024
        s_movk_i32 s52, 1280
        v_lshlrev_b32 v16, 4, v15
        v_mad_u32_u24 v16, v14, s52, v16""")
        CP = 176
        for k, sreg in enumerate((51, 50)):
            for i in range(5):
                e(f"buffer_load_dwordx4 {vr(CP+20*k+4*i,4)}, v16, {WS}, s{sreg} offen")
                if i < 4: e(f"s_add_u32 s{sreg}, s{sreg}, 5120")
        e(f"buffer_load_dwordx4 {vr(vXP,4)}, v{vL16}, {WS}, s{sXA} offen offset:{L.XA[0]}")
        e(f"buffer_load_dwordx4 {vr(vXP+4,4)}, v{vL16}, {WS}, s{sXA} offen offset:{L.XA[0]+1024}")
        e(f"buffer_load_dwordx2 {vr(vXP+8,2)}, v{vL16}, {WS}, s{sXB} offen offset:{L.XA[0]}")
        self.cs_pending = CP
    def cs_reduce(self):
        e = self.e; CP = self.cs_pending
        o = self.alloc("cs", CS_OFF, 1280); self.named["cs"] = o
        e(f"s_lshl_b32 s50, s{sW}, 8\ns_add_u32 s50, s50, {CS_OFF}")
        e(f"v_and_b32 v16, 0xf0, v{vL16}\nv_add_u32 v17, s50, v16\nv_add_u32 v16, {CS_OFF+1024}, v16")
        for k in range(2):
            b = CP + 20 * k
            for i in (1, 2, 3, 4):
                e(f"v_pk_add_f32 {vr(b,2)}, {vr(b,2)}, {vr(b+4*i,2)}")
                e(f"v_pk_add_f32 {vr(b+2,2)}, {vr(b+2,2)}, {vr(b+4*i+2,2)}")
            for sw in ("v_permlane16_swap_b32", "v_permlane32_swap_b32"):
                for r in range(4): e(f"v_mov_b32 v{b+4+r}, v{b+r}")
                for r in range(4): e(f"{sw} v{b+r}, v{b+4+r}")
                e(f"v_pk_add_f32 {vr(b,2)}, {vr(b,2)}, {vr(b+4,2)}")
                e(f"v_pk_add_f32 {vr(b+2,2)}, {vr(b+2,2)}, {vr(b+6,2)}")
            o.dsw = e(f"ds_write_b128 v{17-k}, {vr(b,4)}")

    def p1(self, l):
        e = self.e; N = self.named
        ACC, HACC, AR, BR, NB, DA = 16, 80, 88, 128, 12, 5
        STQ = 216
        STA, CQ = 228, 234
        STB, CSA, CSAH, CSV = 176, 200, 220, 224
        acc = lambda t, i: ACC + (2 * t + i) * 4
        def aload(k):
            def f0():
                r, imm = self.soff("a", sT + 3, sAX, L.XA[2 * l] + k * 1024)
                e(f"buffer_load_dwordx4 {vr(AR+(k%DA)*8,4)}, v{vL16}, {WS}, s{r} offen offset:{imm} sc1")
            def f1():
                r, imm = self.soff("a", sT + 3, sAX, L.XA[2 * l] + k * 1024)
                e(f"buffer_load_dwordx4 {vr(AR+(k%DA)*8+4,4)}, v{vL16B}, {WS}, s{r} offen offset:{imm} sc1")
            return [f0, f1]
        e(f"s_add_u32 s{sT}, s{sSTI}, {L.ST[2*l]}")
        if l == 0:
            for k in range(DA):
                for f in aload(k) + self.w1_chunk(l, k) + self.halo_block(l, k): f()
                if k == 0:
                    e(f"buffer_load_dwordx4 {vr(STQ,4)}, v{vL16}, {WS}, s{sT} offen sc1")
                    e(f"buffer_load_dwordx4 {vr(STQ+4,4)}, v{vL16}, {WS}, s{sT} offen offset:1024 sc1")
                    e(f"buffer_load_dwordx4 {vr(STQ+8,4)}, v{vL16}, {WS}, s{sSTH0} offen sc1")
            q = []
            for c in range(5, 17): q += self.w1_chunk(l, c)
            if self.cfg.get("fine"): self.stamp("issued")
            if self.cfg.get("fine"): e.wait(vm=11); self.stamp("csp")
            self.cs_reduce()
            if self.cfg.get("fine"): self.stamp("csred")
        else:
            for k in range(DA):
                for f in aload(k) + self.halo_block(l, k): f()
                if k == 0:
                    e(f"buffer_load_dwordx4 {vr(STQ,4)}, v{vL16}, {WS}, s{sT} offen sc1")
                    e(f"buffer_load_dwordx4 {vr(STQ+4,4)}, v{vL16}, {WS}, s{sT} offen offset:1024 sc1")
                    e(f"buffer_load_dwordx4 {vr(STQ+8,4)}, v{vL16}, {WS}, s{sSTH1} offen sc1")
            q = []
            for c in range(12, 17): q += self.w1_chunk(l, c)
        reads = []
        std = (vL16, vLDS1, vLDS2); hk = (vHK, vHK + 1, vHK + 2)
        mf = []; use = []
        for k in range(20):
            n0 = len(reads)
            cn = f"w1_{l}_{k}"
            for t in range(8): reads.append((cn, t * 1024, std, False))
            reads.append((f"ha_{l}_{k//4}", (k % 4) * 1024, std, k % 4 == 3))
            reads.append((cn, 0, hk, False))
            reads.append((cn, 3072, hk, True))
            fr = lambda n: vr(BR + 4 * (n % NB), 4)
            for t in range(8):
                for i in range(2):
                    A = vr(AR + (k % DA) * 8 + 4 * i, 4); C = vr(acc(t, i), 4) if k else "0"
                    a, b = (fr(n0 + t), A) if t <= 4 else (A, fr(n0 + t))
                    mf.append(f"v_mfma_f32_16x16x32_bf16 {vr(acc(t,i),4)}, {a}, {b}, {C}"); use.append([n0 + t])
            mf.append(f"v_mfma_f32_16x16x32_bf16 {vr(HACC,4)}, {fr(n0+9)}, {fr(n0+8)}, {vr(HACC,4) if k else 0}"); use.append([n0 + 8, n0 + 9])
            mf.append(f"v_mfma_f32_16x16x32_bf16 {vr(HACC+4,4)}, {fr(n0+8)}, {fr(n0+10)}, {vr(HACC+4,4) if k else 0}"); use.append([n0 + 8, n0 + 10])
        pre, post = {}, {}
        P = lambda d, i, f: d.setdefault(i, []).append(f)
        AH = 7
        tok = {}
        def mkread(n):
            def f():
                nm, off, bases, last = reads[n]
                tok[n] = self.rd(N[nm], BR + 4 * (n % NB), off, 4, bases, last)
            return f
        lastuse = {}; firstuse = {}
        for i, u in enumerate(use):
            for n in u: lastuse[n] = i; firstuse.setdefault(n, i)
        BARK = [k for k in range(20) if k % 2 == 0]
        def mkbar(k):
            def f():
                need = [N[f"w1_{l}_{c}"].vm for c in (k, k + 1)] + [N[f"ha_{l}_{c//4}"].vm for c in (k, k + 1)]
                e.wait(vm=max(need)); self.barrier()
            return f
        for n in range(AH, len(reads)):
            pos = max(firstuse[n - AH], lastuse.get(n - NB, 0))
            if n % 11 == 0 and (n // 11) in BARK: P(post, pos, mkbar(n // 11))
            P(post, pos, mkread(n))
        for n in range(0, len(reads), 2):
            P(pre, firstuse[n], (lambda n=n: e.wait(ds=tok.get(n + 1, tok[n]))))
        gate = {}
        for c in (17, 18, 19): gate[c] = self.w1_chunk(l, c)
        w2q = [self.w2_block(l, b)[0] for b in range(25)]
        extra = list(self.cfg.get(("p1extra", l), lambda s: [])(self))
        for k in range(20):
            base = 18 * k
            if k >= 1 and k + DA - 1 < 20:
                f0, f1 = aload(k + DA - 1); P(post, base + 1, f0); P(post, base + 4, f1)
            slots = [base + 7, base + 10, base + 13, base + 16]
            items = []
            if k in (3, 4, 5): items += gate[14 + k]
            while len(items) < 4 and q: items.append(q.pop(0))
            if k >= 5:
                while len(items) < (4 if k + DA - 1 >= 20 else 3) and w2q and (24 + 4 * (25 - len(w2q)) + 3) // 8 <= (k // 2) * 2 - 2 + (0 if k % 2 == 0 else 0):
                    items.append(w2q.pop(0))
            while len(items) < 4 and extra: items.append(extra.pop(0))
            for s, f in zip(slots, items): P(post, s, f)
        assert not q and not extra, (len(q), len(extra))
        def stats_all():
            for x in range(3): self.stats16(STQ + 4 * x, STA + 2 * x)
            so = self.alloc(f"stb{l}", STB_OFF, 1536, private=True); N["stb"] = so
            e(f"s_mul_i32 s{sT}, s{sW}, 384\ns_add_u32 s{sT}, s{sT}, {STB_OFF}")
            e(f"v_and_b32 v{STQ}, 0x100, v{vL16}\nv_lshrrev_b32 v{STQ}, 2, v{STQ}\nv_add3_u32 v{STQ}, v{STQ}, v{vPOLL}, s{sT}")
            e(f"v_lshrrev_b32 v{STQ+1}, 8, v{vL16}\nv_lshl_add_u32 v{STQ+1}, v{STQ+1}, 4, s{sT}")
            for x in range(3):
                e(f"v_cndmask_b32 v{STQ+2+x}, v{STA+2*x}, v{STA+2*x+1}, s[{mODD}:{mODD+1}]")
                so.dsw = e(f"ds_write_b32 v{STQ}, v{STQ+2+x} offset:{128*x}")
            e.wait(ds=so.dsw)
            for x in range(3):
                e(f"ds_read_b128 {vr(STB+8*x,4)}, v{STQ+1} offset:{128*x}")
                so.lastread = e(f"ds_read_b128 {vr(STB+8*x+4,4)}, v{STQ+1} offset:{128*x+64}")
            so.done = True
            c = f2u(20 ** -0.5 * LOG2E)
            e(f"v_mul_f32 v{CQ}, 0x{c:x}, v{STA+1}\nv_mul_f32 v{CQ+1}, 0x{c:x}, v{STA+3}")
        e.wait(vm=max(N[f"w1_{l}_{c}"].vm for c in (0, 1)))
        e.wait(vm=N[f"ha_{l}_0"].vm, ds=e.ds_seq)
        if self.cfg.get("fine"): self.stamp("landed")
        self.barrier()
        for n in range(AH): mkread(n)()
        stats_all()
        self.stamp(f"p1.{l}.loop")
        self.loop(mf, pre, post)
        for f in w2q: f()
        e.wait(ds=e.ds_seq)
        self.barrier()
        self.stamp(f"p1.{l}.epi")
        for f in self.cfg.get(("p1post", l), lambda s: [])(self): f()
        cs = N["cs"]
        T0 = 172
        e(f"v_lshrrev_b32 v{T0}, 8, v{vL16}\nv_lshlrev_b32 v{T0}, 4, v{T0}\nv_add_u32 v{T0}, {CS_OFF}, v{T0}")
        e(f"v_add_u32 v{T0+1}, {CS_OFF}, v{vPOLL}")
        e(f"s_min_u32 s{sT}, s{sW}, 2\ns_lshl_b32 s{sT}, s{sT}, 6")
        e(f"v_add_u32 v{T0+2}, s{sT}, v{T0}\nv_add_u32 v{T0+3}, s{sT}, v{T0+1}")
        for t in range(5): e(f"ds_read_b128 {vr(CSA+4*t,4)}, v{T0} offset:{64*t}")
        e(f"ds_read_b128 {vr(CSAH,4)}, v{T0+2} offset:128")
        for t in range(3): e(f"ds_read_b32 v{CSV+t}, v{T0+1} offset:{320+64*t}")
        e(f"ds_read_b32 v{CSV+3}, v{T0+3} offset:320")
        BO, BP, BP0 = 88, 92, 96
        QS, KS, VS, T4P, M4 = 100, 116, 134, 152, 156
        e(f"v_lshrrev_b32 v{T0}, 8, v{vL16}\nv_lshrrev_b32 v{T0+1}, 2, v{vPOLL}\nv_lshlrev_b32 v{T0}, 2, v{T0}\nv_sub_u32 v{T0}, v{T0+1}, v{T0}")
        e(f"v_mov_b32 v{T0+1}, 0x{f2u(-1e30):x}")
        for r in range(4):
            e(f"v_subrev_u32 v{T0+2}, {r}, v{T0}")
            e(f"v_cmp_gt_u32 vcc, 8, v{T0+2}")
            e(f"v_cndmask_b32 v{BO+r}, v{T0+1}, 0, vcc") if False else e(f"v_cndmask_b32_e64 v{BO+r}, v{T0+1}, 0, vcc")
            e(f"v_cmp_gt_i32 vcc, -8, v{T0+2}")
            e(f"v_cndmask_b32_e64 v{BP+r}, v{T0+1}, 0, vcc")
        e(f"s_cmp_eq_u32 s{sFIRST}, 1\ns_cselect_b64 vcc, -1, 0")
        for r in range(4): e(f"v_cndmask_b32 v{BP0+r}, v{BP+r}, v{T0+1}, vcc")
        for i in range(2): e(f"v_cndmask_b32_e64 v{M4+i}, v{STA+2*i+1}, 1.0, s[{mLT2}:{mLT2+1}]")
        def foldA(a, cs4, st, mul, dst):
            for h in range(2):
                e(f"v_pk_fma_f32 {vr(a+2*h,2)}, {vr(cs4+2*h,2)}, {vr(st,2)}, {vr(a+2*h,2)} op_sel_hi:[1,0,1] neg_lo:[0,1,0] neg_hi:[0,1,0]")
            if mul:
                for h in range(2):
                    e(f"v_pk_mul_f32 {vr(a+2*h,2)}, {vr(a+2*h,2)}, {vr(mul[0],2)} op_sel:[0,{mul[1]}] op_sel_hi:[1,{mul[1]}]")
            for d in dst:
                for h in range(2): e(f"v_cvt_pk_bf16_f32 v{d+h}, v{a+2*h}, v{a+2*h+1}")
        def foldB(a, csr, stb, dst):
            pr, sel = csr & ~1, csr & 1
            for h in range(2):
                e(f"v_pk_fma_f32 {vr(a+2*h,2)}, {vr(stb+2*h,2)}, {vr(pr,2)}, {vr(a+2*h,2)} op_sel:[0,{sel},0] op_sel_hi:[1,{sel},1] neg_lo:[1,0,0] neg_hi:[1,0,0]")
            for h in range(2):
                e(f"v_pk_mul_f32 {vr(a+2*h,2)}, {vr(a+2*h,2)}, {vr(stb+4+2*h,2)}")
            for h in range(2): e(f"v_cvt_pk_bf16_f32 v{dst+h}, v{a+2*h}, v{a+2*h+1}")
        ks = lambda x: KS + 6 * x
        vs = lambda t, x: VS + 6 * (t - 5) + 2 * x
        ONES = 158
        e(f"v_mov_b32 v{ONES}, 0x3f803f80")
        xb = self.alloc(f"xb{l}", XB_OFF, 15360)
        HP = 160
        foldA(HACC, CSAH, STA + 4, (STA + 4, 1), [HP])
        foldB(HACC + 4, CSV + 3, STB + 16, HP + 2)
        for h in range(2): e(f"v_cndmask_b32 v{HP+2+h}, v{HP+2+h}, v{ONES}, s[{mH1}:{mH1+1}]")
        e(f"""v_lshrrev_b32 v{T0}, 1, v{vL16}
        s_cmp_ge_u32 s{sW}, 2
        s_cselect_b32 s{sT}, 256, 0
        s_cselect_b32 s{sT+4}, 512, s{sM1}
        v_xor_b32 v{T0+1}, s{sT}, v{T0}
        s_add_u32 s{sT+4}, s{sT+4}, {XB_OFF}
        v_add_u32 v{T0+1}, s{sT+4}, v{T0+1}
        s_min_u32 s{sT}, s{sW}, 2
        s_lshl_b32 s{sT}, s{sT}, 9
        s_add_u32 s{sT}, s{sT}, {XB_OFF+1536}
        v_add_u32 v{T0+2}, s{sT}, v{T0}
        s_add_u32 s{sT}, s{sM3}, {XB_OFF}
        v_add_u32 v{T0}, s{sT}, v{T0}""")
        e(f"ds_write_b64 v{T0+1}, {vr(HP,2)}")
        e(f"ds_write_b64 v{T0+2}, {vr(HP+2,2)}")
        def kv(i):
            foldA(acc(2, i), CSA + 8, STA + 2 * i, (STA + 2 * i, 1), [ks(1 + i)])
            foldA(acc(3, i), CSA + 12, STA + 2 * i, (STA + 2 * i, 1), [ks(1 + i) + 4])
            foldA(acc(4, i), CSA + 16, STA + 2 * i, (M4, i), [T4P + 2 * i, ks(1 + i) + 2])
            for h in range(2):
                e(f"v_cndmask_b32_e64 v{QS+8*i+2+h}, 0, v{T4P+2*i+h}, s[{mG0}:{mG0+1}]")
                e(f"v_cndmask_b32_e64 v{QS+8*i+4+h}, 0, v{T4P+2*i+h}, s[{mG1}:{mG1+1}]")
            for t in (5, 6, 7): foldB(acc(t, i), CSV + t - 5, STB + 8 * i, vs(t, 1 + i))
            for h in range(2): e(f"v_permlane32_swap_b32 v{T4P+2*i+h}, v{ks(1+i)+2+h}")
            for h in range(2): e(f"v_cndmask_b32 v{vs(7,1+i)+h}, v{vs(7,1+i)+h}, v{ONES}, s[{mC8}:{mC8+1}]")
        kv(1)
        for p in range(3): e(f"ds_write_b64 v{T0}, {vr(ks(2)+2*p,2)} offset:{3072+512*p}")
        for p in range(3): xb.dsw = e(f"ds_write_b64 v{T0}, {vr(vs(5+p,2),2)} offset:{3072+1536+512*p}")
        kv(0)
        e.wait(ds=xb.dsw); self.barrier()
        for p in range(3): e(f"ds_read_b64 {vr(ks(0)+2*p,2)}, v{T0} offset:{512*p}")
        for p in range(3): xb.lastread = e(f"ds_read_b64 {vr(vs(5+p,0),2)}, v{T0} offset:{1536+512*p}")
        xb.done = True
        for i in range(2):
            foldA(acc(0, i), CSA, STA + 2 * i, None, [QS + 8 * i])
            foldA(acc(1, i), CSA + 4, STA + 2 * i, None, [QS + 8 * i + 6])
        SS, PP, OM, OXR, MM = 16, 48, 64, 160, 152
        combos = [(0, 0), (0, 1), (1, 0), (1, 1)]
        for c in (2, 3, 0, 1):
            i, h = combos[c]
            e(f"v_mfma_f32_16x16x32_bf16 {vr(SS+8*c+4,4)}, {vr(ks(1+i)+2*h,4)}, {vr(QS+8*i+4*h,4)}, {vr(BO,4)}")
            e(f"v_mfma_f32_16x16x32_bf16 {vr(SS+8*c,4)}, {vr(ks(i)+2*h,4)}, {vr(QS+8*i+4*h,4)}, {vr(BP if i else BP0,4)}")
        CQS = 156
        e(f"v_cndmask_b32 v{CQS}, v{CQ+1}, v{CQ}, s[{mLT2}:{mLT2+1}]")
        for st in range(4):
            for c in (2, 3, 0, 1):
                s = SS + 8 * c
                if st == 0: e(f"v_max3_f32 v{MM+c}, v{s}, v{s+1}, v{s+2}")
                elif st < 3: e(f"v_max3_f32 v{MM+c}, v{MM+c}, v{s+1+2*st}, v{s+2+2*st}")
                else: e(f"v_max_f32 v{MM+c}, v{MM+c}, v{s+7}")
        e(f"""v_permlane16_swap_b32 v{MM+2}, v{MM+3}
        v_permlane16_swap_b32 v{MM}, v{MM+1}
        v_max_f32 v{MM+2}, v{MM+2}, v{MM+3}
        v_max_f32 v{MM}, v{MM}, v{MM+1}
        v_permlane32_swap_b32 v{MM}, v{MM+2}
        v_max_f32 v{MM}, v{MM}, v{MM+2}
        v_mul_f32_e64 v{MM}, -v{MM}, v{CQS}
        v_mov_b32 v{MM+2}, v{MM}
        v_permlane32_swap_b32 v{MM}, v{MM+2}
        v_mov_b32 v{MM+1}, v{MM}
        v_mov_b32 v{MM+3}, v{MM+2}
        v_permlane16_swap_b32 v{MM}, v{MM+1}
        v_permlane16_swap_b32 v{MM+2}, v{MM+3}""")
        for c in range(4):
            i, h = combos[c]; s = SS + 8 * c
            for k in range(4):
                e(f"v_pk_fma_f32 {vr(s+2*k,2)}, {vr(s+2*k,2)}, {vr(CQ,2)}, {vr(MM+(c&~1),2)} op_sel:[0,{i},{c&1}] op_sel_hi:[1,{i},{c&1}]")
            for k in range(8): e(f"v_exp_f32 v{s+k}, v{s+k}")
            for k in range(4): e(f"v_cvt_pk_bf16_f32 v{PP+4*c+k}, v{s+2*k}, v{s+2*k+1}")
            e(f"v_mfma_f32_16x16x32_bf16 {vr(OXR+4*c,4)}, {vr(vs(7,i),4)}, {vr(PP+4*c,4)}, 0")
            e(f"v_mfma_f32_16x16x32_bf16 {vr(OM+4*c,4)}, {vr(vs(5+h,i),4)}, {vr(PP+4*c,4)}, 0")
        INV, OUTM, OUTX = 100, 104, 112
        e(f"s_add_u32 s{sT}, s{sOM}, {L.OA[l]}\ns_add_u32 s{sT+4}, s{sOX}, {L.OA[l]}")
        e(f"v_add_u32 v{OUTX+8}, 20480, v{vOX}")
        for i in range(2):
            for h in range(2):
                c = 2 * i + h
                e(f"v_mov_b32 v{INV+c}, v{OXR+4*c}")
            for h in range(2): e(f"v_permlane32_swap_b32 v{OXR+4*(2*i+h)}, v{INV+2*i+h}")
            for h in range(2): e(f"v_rcp_f32 v{INV+2*i+h}, v{INV+2*i+h}")
            for r in range(4): e(f"v_cndmask_b32 v{OXR+8*i+r}, v{OXR+8*i+4+r}, v{OXR+8*i+r}, s[{mG0}:{mG0+1}]")
            for h in range(2):
                c = 2 * i + h
                for k in range(2): e(f"v_pk_mul_f32 {vr(OM+4*c+2*k,2)}, {vr(OM+4*c+2*k,2)}, {vr(INV+2*i,2)} op_sel:[0,{h}] op_sel_hi:[1,{h}]")
                for k in range(2): e(f"v_cvt_pk_bf16_f32 v{OUTM+4*i+2*h+k}, v{OM+4*c+2*k}, v{OM+4*c+2*k+1}")
            e(f"buffer_store_dwordx4 {vr(OUTM+4*i,4)}, v{vL16B if i else vL16}, {WS}, s{sT} offen")
            e(f"v_cndmask_b32 v{OUTX+4+2*i}, v{INV+2*i+1}, v{INV+2*i}, s[{mG0}:{mG0+1}]")
            for k in range(2): e(f"v_pk_mul_f32 {vr(OXR+8*i+2*k,2)}, {vr(OXR+8*i+2*k,2)}, {vr(OUTX+4+2*i,2)} op_sel_hi:[1,0]")
            for k in range(2): e(f"v_cvt_pk_bf16_f32 v{OUTX+2*i+k}, v{OXR+8*i+2*k}, v{OXR+8*i+2*k+1}")
        e("s_mov_b32 exec_hi, 0")
        e(f"buffer_store_dwordx2 {vr(OUTX,2)}, v{vOX}, {WS}, s{sT+4} offen")
        e(f"buffer_store_dwordx2 {vr(OUTX+2,2)}, v{OUTX+8}, {WS}, s{sT+4} offen")
        e("s_mov_b32 exec_hi, -1")
        e(f"v_add_u32 v16, s{sM1}, v{vL16}\nv_add_u32 v17, s{sM1}, v{vLDS1}")
        for b in range(25): self.rd(N[f"w2_{l}_{b}"], 128 + 4 * b, 0, 4, (16, 17, 17), True)
        self.stamp(f"p1.{l}.done")
        if l == 0:
            e.wait_all()
            self.poll(sFL, 15 * 2048, vPOLL, 18, acquire=False)
            e(f"v_readfirstlane_b32 s{sT}, v18")
            e(f"v_cmp_ne_u32 vcc, s{sT}, v18")
            e("s_cmp_eq_u64 vcc, 0")
            e(f"s_cselect_b32 s{sLOC}, 1, 0")
            if self.cfg.get("force_slow"): e(f"s_mov_b32 s{sLOC}, 0")
        self.signal(4 * l)

    def pk(self, l, four):
        e = self.e; N = self.named
        NK = 12 if four else 5
        tag = f"p{4 if four else 2}.{l}"
        ACC = (16, 36); AR = 56
        NA = 18 if not four else 24
        if not four: NA = 18
        PRT = 152 if four else 56
        abase = (L.HA if four else L.OA)[l]; sA = sA4 if four else sA2
        wf = (lambda ks, t: ar(4 * (ks * 5 + t), 4)) if four else (lambda ks, t: vr(128 + 4 * (ks * 5 + t), 4))
        nfr = 4 * NK
        def aload(n):
            def f():
                r, imm = self.soff("a", sT + 3, sA + n // NK, abase + (n % NK) * 1024)
                e(f"buffer_load_dwordx4 {vr(AR+4*(n%NA),4)}, v{vL16}, {WS}, s{r} offen offset:{imm} sc1")
            return f
        for n in range(NA): aload(n)()
        VW, VR = 228, 231
        for t in range(3):
            e(f"s_add_u32 s{sT}, s{sW}, {1+t}\ns_and_b32 s{sT}, s{sT}, 3\ns_mul_i32 s{sT}, s{sT}, 15360\ns_add_u32 s{sT}, s{sT}, {PART_OFF + t*5120}")
            e(f"v_add_u32 v{VW+t}, s{sT}, v{vL16}")
        e(f"s_mul_i32 s{sT}, s{sW}, 15360\ns_add_u32 s{sT}, s{sT}, {PART_OFF}\nv_add_u32 v{VR}, s{sT}, v{vL16}")
        po = self.alloc(f"part{tag}", PART_OFF, 61440)
        mf = []; pre = {}; post = {}
        P = lambda d, i, f: d.setdefault(i, []).append(f)
        for t in range(4):
            for ks in range(NK):
                n = t * NK + ks
                for tp in range(5):
                    a = ACC[t & 1] + 4 * tp
                    C = vr(a, 4) if (ks or t == 3) else "0"
                    mf.append(f"v_mfma_f32_16x16x32_bf16 {vr(a,4)}, {wf(ks,tp)}, {vr(AR+4*(n%NA),4)}, {C}")
                if n + NA < nfr: P(post, 5 * n + 5, aload(n + NA))
        R = 5 * NK
        def pw(t, tp):
            def f(): po.dsw = e(f"ds_write_b128 v{VW+t}, {vr(ACC[t&1]+4*tp,4)} offset:{1024*tp}")
            return f
        for t in range(3):
            for tp in range(5): P(post, R * (t + 1) + 3 + 2 * tp, pw(t, tp))
        ux = []
        for k in range(10):
            ux.append(f"v_lshlrev_b32 v{ACC[1]+2*k}, 16, v{vXP+k}")
            ux.append(f"v_and_b32 v{ACC[1]+2*k+1}, 0xffff0000, v{vXP+k}")
        for k, s in enumerate(ux): P(post, 2 * R + 12 + k // 2, s)
        def bar():
            e.wait(ds=po.dsw); self.barrier()
        P(post, 3 * R + 12, bar)
        if not four: prt = lambda s, tp: (AR + 8 + 20 * s + 4 * tp) if s < 2 else ACC[0] + 4 * tp
        else: prt = lambda s, tp: PRT + 20 * s + 4 * tp
        def pr(s, tp):
            def f():
                t = e(f"ds_read_b128 {vr(prt(s,tp),4)}, v{VR} offset:{5120*s+1024*tp}"); po.lastread = t
                assert po.landed is not None
            return f
        items = [pr(s, tp) for tp in range(5) for s in range(3)]
        for k, f in enumerate(items): P(post, 3 * R + 12 + (k // 2 if not four else k), f)
        adds = []
        for tp in range(5):
            for h in range(2):
                adds.append(f"v_pk_add_f32 {vr(prt(0,tp)+2*h,2)}, {vr(prt(0,tp)+2*h,2)}, {vr(prt(1,tp)+2*h,2)}")
                adds.append(f"v_pk_add_f32 {vr(prt(0,tp)+2*h,2)}, {vr(prt(0,tp)+2*h,2)}, {vr(prt(2,tp)+2*h,2)}")
        if four:
            for k, s in enumerate(adds): P(post, 3 * R + 34 + k, s)
            adds = []
        extra = list(self.cfg.get((tag[:2] + "extra", l), lambda s: [])(self))
        k = 3
        while extra:
            assert k < 3 * R, "too many extras"
            P(post, k, extra.pop(0)); k += self.cfg.get("pkstep", 5)
        self.stamp(tag + ".loop")
        self.loop(mf, pre, post)
        po.done = True
        self.stamp(tag + ".epi")
        for s in adds: e(s)
        A1 = ACC[1]
        for tp in range(5):
            for h in range(2): e(f"v_pk_add_f32 {vr(A1+4*tp+2*h,2)}, {vr(A1+4*tp+2*h,2)}, {vr(prt(0,tp)+2*h,2)}")
            for h in range(2): e(f"v_cvt_pk_bf16_f32 v{vXP+2*tp+h}, v{A1+4*tp+2*h}, v{A1+4*tp+2*h+1}")
        if four and l == 1:
            e(f"v_lshrrev_b32 v16, 8, v{vL16}\nv_lshrrev_b32 v17, 2, v{vPOLL}\ns_movk_i32 s{sT}, 2560\nv_lshlrev_b32 v16, 3, v16\nv_mad_u32_u24 v16, v17, s{sT}, v16")
            for tp in range(4): e(f"buffer_store_dwordx2 {vr(vXP+2*tp,2)}, v16, {OUT}, s{sOA} offen offset:{32*tp}")
            e(f"buffer_store_dwordx2 {vr(vXP+8,2)}, v16, {OUT}, s{sOB} offen")
            return
        xi = 2 * l + (2 if four else 1)
        e(f"s_add_u32 s{sT}, s{sXA}, {L.XA[xi]}\ns_add_u32 s{sT+4}, s{sXB}, {L.XA[xi]}\ns_add_u32 s{sT+5}, s{sSTO}, {L.ST[xi]}")
        e(f"buffer_store_dwordx4 {vr(vXP,4)}, v{vL16}, {WS}, s{sT} offen")
        e(f"buffer_store_dwordx4 {vr(vXP+4,4)}, v{vL16}, {WS}, s{sT} offen offset:1024")
        e(f"buffer_store_dwordx2 {vr(vXP+8,2)}, v{vL16}, {WS}, s{sT+4} offen")
        e("v_mov_b32 v20, 0x3f803f80")
        for k in range(10):
            c0 = f"v{16+2*(k&1)}" if k >= 2 else "0"; c1 = f"v{17+2*(k&1)}" if k >= 2 else "0"
            e(f"v_dot2_f32_bf16 v{16+2*(k&1)}, v{vXP+k}, v20, {c0}")
            e(f"v_dot2_f32_bf16 v{17+2*(k&1)}, v{vXP+k}, v{vXP+k}, {c1}")
        e("""v_pk_add_f32 v[16:17], v[16:17], v[18:19]
        v_permlane16_swap_b32 v16, v17
        v_add_f32 v16, v16, v17
        v_mov_b32 v17, v16
        v_permlane32_swap_b32 v16, v17
        v_add_f32 v16, v16, v17
        v_mov_b32 v17, v16
        v_permlane16_swap_b32 v16, v17
        s_mov_b32 exec_lo, 0xffff
        s_mov_b32 exec_hi, 0""")
        e(f"buffer_store_dwordx2 v[16:17], v{vL16}, {WS}, s{sT+5} offen")
        e("s_mov_b64 exec, -1")
        self.stamp(tag + ".done")
        self.signal(4 * l + (3 if four else 1))
        if four:
            lab = e.label("HW")
            e(f"s_cmp_eq_u32 s{sHW}, 0\ns_cbranch_scc1 {lab}")
            d = f"""s_mul_i32 s{sT+6}, s{sG}, {7*20480}
            s_add_u32 s{sT+6}, s{sT+6}, {7*20480}
            s_sub_u32 s{sT}, s{sXA}, s{sT+6}
            s_add_u32 s{sT}, s{sT}, {L.HX}
            s_sub_u32 s{sT+4}, s{sXB}, s{sT+6}
            s_add_u32 s{sT+4}, s{sT+4}, {L.HX}
            buffer_store_dwordx4 {vr(vXP,4)}, v{vL16}, {WS}, s{sT} offen sc1
            buffer_store_dwordx4 {vr(vXP+4,4)}, v{vL16}, {WS}, s{sT} offen offset:1024 sc1
            buffer_store_dwordx2 {vr(vXP+8,2)}, v{vL16}, {WS}, s{sT+4} offen sc1
            s_mul_i32 s{sT+6}, s{sG}, {7*1024}
            s_add_u32 s{sT+6}, s{sT+6}, {7*1024}
            s_sub_u32 s{sT+5}, s{sSTO}, s{sT+6}
            s_add_u32 s{sT+5}, s{sT+5}, {L.HST}
            s_mov_b32 exec_lo, 0xffff
            s_mov_b32 exec_hi, 0
            buffer_store_dwordx2 v[16:17], v{vL16}, {WS}, s{sT+5} offen sc1
            s_waitcnt vmcnt(0)
            s_lshl_b32 s{sT}, s{sM}, 2
            s_add_u32 s{sT}, s{sT}, s{sFL}
            s_add_u32 s{sT}, s{sT}, {8*2048}
            s_mov_b64 exec, 1
            buffer_store_dword v{vONE}, off, {WS}, s{sT} sc1
            s_mov_b64 exec, -1"""
            for ln in d.split("\n"): e.raw(ln.strip())
            e.place(lab)

    def p3(self, l):
        e = self.e; N = self.named
        ACC, AR, DA, BR, NB, AH = 16, 112, 6, 160, 8, 6
        STQ, MU, C3, SG = 192, 200, 202, 203
        xi = 2 * l + 1
        def aload(k, ee):
            def f():
                r, imm = self.soff("a", sT + 3, sAX, L.XA[xi] + k * 1024 + ee * 512)
                e(f"buffer_load_dwordx4 {vr(AR+(k%DA)*8+4*ee,4)}, v{vA3}, {WS}, s{r} offen offset:{imm} sc1")
            return f
        e(f"s_add_u32 s{sT}, s{sSTI}, {L.ST[xi]}")
        for k in range(DA):
            aload(k, 0)(); aload(k, 1)()
            if k == 0:
                e(f"buffer_load_dwordx4 {vr(STQ,4)}, v{vST3}, {WS}, s{sT} offen sc1")
                e(f"buffer_load_dwordx4 {vr(STQ+4,4)}, v{vST3}, {WS}, s{sT} offen offset:256 sc1")
        q = []
        for c in range(20):
            if f"w3_{l}_{c}" not in N: q.append((c, self.w3_chunk(l, c)))
        mf = []; pre = {}; post = {}; tok = {}
        P = lambda d, i, f: d.setdefault(i, []).append(f)
        for k in range(20):
            for j in range(12):
                n = 12 * k + j; a = ACC + 16 * (j % 6)
                mf.append(f"v_mfma_f32_32x32x16_bf16 {vr(a,16)}, {vr(BR+4*(n%NB),4)}, {vr(AR+(k%DA)*8+4*(j//6),4)}, {vr(a,16) if n >= 6 else 0}")
        def mkread(n):
            def f(): tok[n] = self.rd(N[f"w3_{l}_{n//12}"], BR + 4 * (n % NB), (n % 12) * 1024, 4, last=(n % 12 == 11))
            return f
        def mkbar(k):
            def f():
                e.wait(vm=max(N[f"w3_{l}_{c}"].vm for c in (k, k + 1))); self.barrier()
            return f
        for n in range(AH, 240):
            if n % 24 == 0: P(post, n - AH, mkbar(n // 12))
            P(post, n - AH, mkread(n))
        for n in range(0, 240, 2): P(pre, n, (lambda n=n: e.wait(ds=tok[n + 1])))
        extra = list(self.cfg.get(("p3extra", l), lambda s: [])(self))
        for k in range(20):
            b = 12 * k
            if k >= 1 and k + DA - 1 < 20:
                P(post, b + 0, aload(k + DA - 1, 0)); P(post, b + 2, aload(k + DA - 1, 1))
            slots = [b + 4, b + 6, b + 8, b + 10, b + 1, b + 3, b + 5, b + 7, b + 9, b + 11] if k + DA - 1 < 20 else [b + i for i in (0, 2, 4, 6, 8, 10, 1, 3, 5, 7)]
            items = []
            if q:
                c = q[0][0]
                prev = self.W3SLOT[c] if c >= 13 else None
                if prev is None or k >= ((prev + 3) // 2) * 2: items += q.pop(0)[1]
            nmax = self.cfg.get("p3rate", 4)
            while len(items) < nmax and extra and extra[0][0] <= k: items.append(extra.pop(0)[1])
            for s, f in sorted(zip(slots, range(len(items)))): pass
            for s, f in zip(sorted(slots[:len(items)]), items): P(post, s, f)
        assert not q and not extra, (len(q), len(extra))
        e.wait(vm=max(N[f"w3_{l}_{c}"].vm for c in (0, 1)), ds=e.ds_seq)
        self.barrier()
        for n in range(AH): mkread(n)()
        e(f"v_pk_add_f32 {vr(STQ,2)}, {vr(STQ,2)}, {vr(STQ+2,2)}")
        e(f"v_pk_add_f32 {vr(STQ+4,2)}, {vr(STQ+4,2)}, {vr(STQ+6,2)}")
        e(f"v_pk_add_f32 {vr(STQ,2)}, {vr(STQ,2)}, {vr(STQ+4,2)}")
        e(f"v_mov_b32 v{STQ+2}, v{STQ}\nv_mov_b32 v{STQ+3}, v{STQ+1}")
        e(f"v_permlane32_swap_b32 v{STQ}, v{STQ+2}\nv_permlane32_swap_b32 v{STQ+1}, v{STQ+3}")
        e(f"v_pk_add_f32 {vr(STQ,2)}, {vr(STQ,2)}, {vr(STQ+2,2)}")
        self.stats_fin(STQ, MU)
        e(f"v_mul_f32 v{C3}, 0x{f2u(-LOG2E):x}, v{MU+1}")
        e(f"v_mul_f32 v{SG}, v{STQ+1}, v{MU+1}")
        e(f"v_lshrrev_b32 v{STQ}, 9, v{vL16}\nv_lshlrev_b32 v{STQ}, 4, v{STQ}\nv_add_u32 v{STQ}, {CS_OFF+512}, v{STQ}")
        self.stamp(f"p3.{l}.loop")
        self.loop(mf, pre, post)
        self.stamp(f"p3.{l}.epi")
        e(f"s_add_u32 s{sT}, s{sH}, {L.HA[l]}")
        CSR = 112
        def csload(T):
            for m_ in range(2):
                for i in range(4): e(f"ds_read_b128 {vr(CSR+32*(T&1)+16*m_+4*i,4)}, v{STQ} offset:{(2*T+m_)*128+32*i}")
        csload(0); csload(1)
        OUTR = 204
        for T in range(3):
            G, U, c = ACC + 32 * T, ACC + 32 * T + 16, CSR + 32 * (T & 1)
            for k in range(8):
                e(f"v_pk_fma_f32 {vr(G+2*k,2)}, {vr(c+2*k,2)}, {vr(MU,2)}, {vr(G+2*k,2)} op_sel_hi:[1,0,1] neg_lo:[0,1,0] neg_hi:[0,1,0]")
            for k in range(8):
                e(f"v_pk_mul_f32 {vr(G+2*k,2)}, {vr(G+2*k,2)}, {vr(C3,2)} op_sel_hi:[1,0]")
            for k in range(8):
                e(f"v_exp_f32 v{G+2*k}, v{G+2*k}\nv_exp_f32 v{G+2*k+1}, v{G+2*k+1}")
                e(f"v_pk_fma_f32 {vr(U+2*k,2)}, {vr(c+16+2*k,2)}, {vr(MU,2)}, {vr(U+2*k,2)} op_sel_hi:[1,0,1] neg_lo:[0,1,0] neg_hi:[0,1,0]")
            if T == 0: csload(2)
            for k in range(8):
                e(f"v_pk_fma_f32 {vr(G+2*k,2)}, {vr(G+2*k,2)}, {vr(C3,2)}, {vr(C3,2)} op_sel:[0,1,1] op_sel_hi:[1,1,1]")
            for ip in range(2):
                o = OUTR + 4 * ((2 * T + ip) % 4)
                for k in range(4 * ip, 4 * ip + 4):
                    e(f"v_rcp_f32 v{G+2*k}, v{G+2*k}\nv_rcp_f32 v{G+2*k+1}, v{G+2*k+1}")
                for k in range(4 * ip, 4 * ip + 4):
                    e(f"v_pk_mul_f32 {vr(U+2*k,2)}, {vr(U+2*k,2)}, {vr(G+2*k,2)}")
                for k in range(4 * ip, 4 * ip + 4):
                    e(f"v_cvt_pk_bf16_f32 v{o+k-4*ip}, v{U+2*k}, v{U+2*k+1}")
                e(f"buffer_store_dwordx4 {vr(o,4)}, v{vHS}, {WS}, s{sT} offen offset:{T*1024+ip*512}")
        self.stamp(f"p3.{l}.done")
        self.signal(4 * l + 2)

    def build(self):
        e = self.e
        self.prologue()
        for l in range(2):
            if l == 1:
                self.poll(sFL, 3 * 2048, vPOLL, 18)
                e(f"v_and_b32 v19, 28, v{vPOLL}\nv_add_u32 v19, 32, v19")
                self.poll(sFLP, 0, 19, 18, acquire=False); self.stamp("polled")
            self.p1(l)
            if self.stop == f"p1.{l}": break
            self.poll(sFL, (4 * l) * 2048, vPOLL, 18); self.stamp("polled")
            self.pk(l, False)
            if self.stop == f"p2.{l}": break
            self.poll(sFL, (4 * l + 1) * 2048, vPOLL, 18); self.stamp("polled")
            self.p3(l)
            if self.stop == f"p3.{l}": break
            self.poll(sFL, (4 * l + 2) * 2048, vPOLL, 18); self.stamp("polled")
            self.pk(l, True)
            if self.stop == f"p4.{l}": break
        self.finish()
        return e

def flat(ll): return [x for l in ll for x in l]
def default_cfg():
    cfg = {}
    for l in range(2):
        cfg[("p1post", l)] = lambda s, l=l: flat(s.w3_chunk(l, c) for c in (0, 1))
        cfg[("p2extra", l)] = lambda s, l=l: flat(s.w3_chunk(l, c) for c in range(2, 8))
    cfg["pkstep"] = 4
    def p3x(s):
        out = []
        w4 = [s.w4_load(n)[0] for n in range(60)]
        w1 = []
        for c in range(12):
            last = max({0: 13, 1: 14, 2: 15}.get(sl, sl) for sl in ((8 * c) // 12, (8 * c + 7) // 12))
            for f in s.w1_chunk(1, c): w1.append((((last + 3) // 2) * 2, f))
        w1.sort(key=lambda x: x[0])
        ev = [(0, f) for f in w4]
        return ev + w1
    cfg[("p3extra", 0)] = p3x
    cfg["p3rate"] = 6
    return cfg

if __name__ == "__main__":
    import sys
    from asmlib import wrap, NAME
    from k0 import gen_k0, RS
    import json
    import subprocess
    def code_bytes(body):
        open("cb.s", "w").write('.amdgcn_target "amdgcn-amd-amdhsa--gfx950"\n.text\n' + body)
        subprocess.check_call(["clang", "-x", "assembler", "-target", "amdgcn-amd-amdhsa", "-mcpu=gfx950", "-c", "cb.s", "-o", "cb.o"])
        subprocess.check_call(["llvm-objcopy", "-O", "binary", "-j", ".text", "cb.o", "cb.bin"])
        import os
        return os.path.getsize("cb.bin")
    def make(path, stamps=False, stop=None, **over):
        cfg = default_cfg(); cfg.update(over)
        m = Main(stamps=stamps, stop=stop, cfg=cfg); e = m.build()
        nbytes = code_bytes(e.text())
        k0 = gen_k0(store_mod=cfg.get("k0mod", ""), warm_label="main_kernel" if cfg.get("warm", True) else None, warm_bytes=nbytes, dbg=cfg.get('hdbg'))
        ks = [dict(name="prep_kernel", body=k0.text(), grid=256, block=256, lds=32*RS, vgpr=176, accum=176),
              dict(name="main_kernel", body=e.text(), grid=256, block=256, lds=160*1024, vgpr=512, accum=256)]
        if cfg.get("empty"): ks.append(dict(name="empty_kernel", body="s_endpgm\n", grid=256, block=256, lds=0, vgpr=8, accum=8))
        if cfg.get("twice"): ks = ks + ks
        if cfg.get("k0twice"): ks = [ks[0]] + ks
        txt = wrap(ks)
        open(path, "w").write(txt)
        print(path, e.stat, len(txt), "bytes")
        json.dump(m.stamp_names, open(path + ".stamps", "w"))
        return e
    make("vH.s", k0mod="sc1", stamps=True, hdbg=True)
    e = make("full.s")
    make("full_st.s", stamps=True)
    make("fine_st.s", stamps=True, fine=True, stop="p2.0")
```

```python
from emit import *
import layout as L
import struct

def f2u(x): return struct.unpack("<I", struct.pack("<f", x))[0]
LOG2E = 1.4426950408889634
KB = 1024
CS_OFF = 156 * KB
STB_OFF = CS_OFF + 1280
HALO_OFF = 136 * KB
XB_OFF = 136 * KB
W2_OFF = 24 * KB
PART_OFF = 96 * KB
WS = "s[4:7]"; OUT = "s[8:11]"
sW, sG, sM, sLOC = 12, 13, 14, 15
sAX, sHAL0, sW1, sW3, sW2, sW4 = 16, 17, 18, 19, 20, 21
sA2, sA4 = 22, 26
sXA, sXB, sSTO, sSTI, sSTH0, sHAL1, sSTH1, sOM, sOX, sH, sFL, sFLP = 30, 31, 32, 33, 34, 35, 36, 37, 38, 39, 40, 41
sM2, sM3, sM1, sBUD, sOA, sOB = 42, 43, 44, 45, 46, 47
sT = 48
mG0, mG1, mLT2, mC8, mH1, mODD = 56, 58, 60, 62, 64, 66
sFIRST, sHW = 68, 69
sSTAMP = 70
vL16, vL16B, vA3, vLDS1, vLDS2, vHK = 0, 1, 2, 4, 5, 6
vPOLL, vONE, vOX, vHS, vST3 = 9, 10, 11, 12, 13
vXP = 246

class Obj:
    def __init__(s, name, off, size, private=False):
        s.name, s.off, s.size, s.private = name, off, size, private
        s.vm = 0; s.dsw = 0; s.landed = None; s.lastread = 0; s.done = False; s.released = None

class Main:
    def __init__(self, stamps=False, stop=None, cfg=None):
        self.e = Em(); self.objs = []; self.stamps = stamps; self.nstamp = 0; self.stop = stop
        self.stamp_names = []
        self.cfg = cfg or {}
        self.streams = {}
    def alloc(self, name, off, size, private=False):
        for o in self.objs:
            if o.off < off + size and off < o.off + o.size:
                assert o.released is not None, f"LDS WAR: {name} over live {o.name}"
        self.objs = [o for o in self.objs if not (o.off < off + size and off < o.off + o.size and o.off >= off and o.off + o.size <= off + size)]
        o = Obj(name, off, size, private); self.objs.append(o); return o
    def barrier(self):
        e = self.e; e.barrier()
        for o in self.objs:
            if o.landed is None and o.vm <= e.vm_done and o.dsw <= e.ds_done: o.landed = e.barriers
            if o.done and o.released is None and o.lastread <= e.ds_done: o.released = e.barriers
    def lds(self, off, bases=(vL16, vLDS1, vLDS2)):
        return f"v{bases[off >> 16]} offset:{off & 0xffff}"
    def rd(self, o, dst, off, n=4, bases=(vL16, vLDS1, vLDS2), last=False):
        e = self.e
        if o.private: e.wait(vm=o.vm, ds=o.dsw if o.dsw else None)
        else: assert o.landed is not None, f"LDS RAW: {o.name} not landed"
        op = {4: "ds_read_b128", 2: "ds_read_b64", 1: "ds_read_b32"}[n]
        t = e(f"{op} {vr(dst, n)}, {self.lds(o.off + off, bases)}")
        o.lastread = t
        if last: o.done = True
        return t
    def soff(self, key, reg, base, const):
        cur = self.streams.get(key)
        if cur and cur[0] == base and 0 <= const - cur[1] <= 4095 - 15:
            return reg, const - cur[1]
        self.e(f"s_add_u32 s{reg}, s{base}, {const}")
        self.streams[key] = (base, const)
        return reg, 0
    def stamp(self, name):
        if not self.stamps: return
        r = sSTAMP + 2 * (self.nstamp % 4)
        if self.nstamp >= 4: self.e(f"v_writelane_b32 v15, s{r}, {self.nstamp-4}")
        self.e(f"s_memtime s[{r}:{r+1}]"); self.nstamp += 1; self.stamp_names.append(name)
    def dma_chunk(self, name, ldsoff, nblk, mreg, base, gconst, key="w", mod=""):
        st = {}
        def mk(p):
            def f():
                e = self.e
                if p == 0:
                    st["o"] = self.alloc(name, ldsoff, 4 * nblk * KB); self.named[name] = st["o"]
                if self.m0_owner != name:
                    e(f"s_add_u32 m0, s{mreg}, {ldsoff}")
                    e(f"s_add_u32 s{sT+1}, s{base}, {gconst}")
                self.m0_owner = name
                st["o"].vm = e(f"buffer_load_dwordx4 v{vL16}, {WS}, s{sT+1} offen offset:{p*1024}{mod} lds")
            return f
        return [mk(p) for p in range(nblk)]
    def w1_chunk(self, l, c):
        slot = c if c < 17 else c - 17
        return self.dma_chunk(f"w1_{l}_{c}", slot * 8 * KB, 2, sM2, sW1, c * 8192)
    W3SLOT = {**{c: c for c in range(13)}, 13: 0, 14: 1, 15: 2, 16: 8, 17: 9, 18: 10, 19: 11}
    def w3_chunk(self, l, c):
        return self.dma_chunk(f"w3_{l}_{c}", self.W3SLOT[c] * 12 * KB, 3, sM3, sW3, c * 12288)
    def w2_block(self, l, b):
        it = self.dma_chunk(f"w2_{l}_{b}", W2_OFF + b * 4 * KB, 1, sM1, sW2, b * 1024)
        def f():
            it[0](); self.named[f"w2_{l}_{b}"].private = True
        return [f]
    def halo_block(self, l, i):
        return self.dma_chunk(f"ha_{l}_{i}", HALO_OFF + i * 4 * KB, 1, sM1, sHAL0 if l == 0 else sHAL1, i * 4096, mod=" sc1")
    def w4_load(self, n):
        def f():
            r, imm = self.soff("w4", sT + 2, sW4, n * 1024)
            self.e(f"buffer_load_dwordx4 {ar(4*n,4)}, v{vL16}, {WS}, s{r} offen offset:{imm}")
        return [f]
    def loop(self, mf, pre, post):
        for i, m in enumerate(mf):
            for f in pre.get(i, []): f() if callable(f) else self.e(f)
            self.e(m)
            for f in post.get(i, []): f() if callable(f) else self.e(f)
    def signal(self, slot):
        e = self.e
        e.wait_all(vm=True, ds=True)
        self.barrier()
        lab = e.label("SG"); lab2 = e.label("SG")
        e(f"s_cmp_lg_u32 s{sW}, 0\ns_cbranch_scc1 {lab}")
        e(f"s_lshl_b32 s{sT}, s{sM}, 2\ns_add_u32 s{sT}, s{sT}, s{sFL}\ns_add_u32 s{sT}, s{sT}, {slot*2048}")
        e("s_mov_b64 exec, 1")
        e(f"s_cmp_eq_u32 s{sLOC}, 0\ns_cbranch_scc1 {lab2}")
        e.raw(f"buffer_store_dword v{vONE}, off, {WS}, s{sT}")
        e("s_mov_b64 exec, -1")
        e(f"s_branch {lab}")
        e.place(lab2)
        e.raw("buffer_wbl2 sc1\ns_waitcnt vmcnt(0)")
        e.raw(f"buffer_store_dword v{vONE}, off, {WS}, s{sT} sc1")
        e("s_mov_b64 exec, -1")
        e.place(lab)
        self.streams = {}
    def poll(self, sreg, const, voff, tmp, acquire=True):
        e = self.e
        assert e.vm_done == e.vm_seq
        top = e.label("PL"); done = e.label("PL")
        e(f"s_add_u32 s{sT}, s{sreg}, {const}")
        e.place(top)
        e.raw(f"buffer_load_dword v{tmp}, v{voff}, {WS}, s{sT} offen sc1")
        e.raw("s_waitcnt vmcnt(0)")
        e.raw(f"v_cmp_eq_u32 vcc, 0, v{tmp}")
        e.raw("s_nop 1")
        e.raw("s_cmp_eq_u64 vcc, 0")
        e.raw(f"s_cbranch_scc1 {done}")
        e.raw(f"s_sub_u32 s{sBUD}, s{sBUD}, 1")
        e.raw(f"s_cbranch_scc0 {top}")
        e.raw(f"s_mov_b32 s{sBUD}, 0")
        e.place(done)
        if acquire:
            lab = e.label("PL")
            e.raw(f"s_cmp_lg_u32 s{sLOC}, 0\ns_cbranch_scc1 {lab}\nbuffer_inv sc1\ns_waitcnt vmcnt(0)")
            e.place(lab)
        e.flush_hazards()
    def finish(self):
        e = self.e
        if self.stamps:
            self.stamp("end")
            e("s_memrealtime s[82:83]")
            e.force_wait("s_waitcnt vmcnt(0) lgkmcnt(0)", vm=True, ds=True)
            e("s_sub_u32 s82, s82, s80\nv_mov_b32 v22, s82\nv_mov_b32 v23, s80")
            e(f"s_lshl_b32 s{sT}, s2, 2\ns_add_u32 s{sT}, s{sT}, s{sW}\ns_lshl_b32 s{sT}, s{sT}, 7\ns_add_u32 s{sT}, s{sT}, {L.DBG}")
            for i in range(self.nstamp - 4, self.nstamp): e(f"v_writelane_b32 v15, s{sSTAMP+2*(i%4)}, {i}")
            e(f"v_lshrrev_b32 v20, 2, v{vL16}")
            e("s_mov_b32 exec_hi, 0")
            e(f"buffer_store_dword v15, v20, {WS}, s{sT} offen")
            e(f"s_lshl_b32 s{sT}, s2, 3\ns_add_u32 s{sT}, s{sT}, {L.DBG+0x40000}\ns_mov_b64 exec, 1")
            e(f"buffer_store_dwordx2 v[22:23], off, {WS}, s{sT}")
            if self.cfg.get("hdbg"):
                e.raw(f"""s_load_dwordx2 s[84:85], s[0:1], 64
s_mov_b32 s86, 256
s_mov_b32 s87, 0x20000
s_waitcnt lgkmcnt(0)
s_add_u32 s88, s2, s{sW}
s_cmp_lg_u32 s88, 0
s_cbranch_scc1 M_fin
buffer_store_dwordx2 v[22:23], off, s[84:87], 0 offset:16
s_mov_b32 s88, 0x2650000
buffer_load_dwordx4 v[24:27], off, s[4:7], s88
s_waitcnt vmcnt(0)
buffer_store_dwordx4 v[24:27], off, s[84:87], 0
v_readlane_b32 s88, v15, 0
s_mov_b64 exec, -1
v_subrev_u32 v15, s88, v15
v_lshrrev_b32 v21, 4, v0
v_and_b32 v22, 3, v21
v_cmp_eq_u32 vcc, 1, v22
s_and_saveexec_b64 s[90:91], vcc
v_lshrrev_b32 v21, 2, v21
v_lshlrev_b32 v21, 2, v21
s_mov_b32 exec_hi, 0
buffer_store_dword v15, v21, s[84:87], 0 offen offset:24
M_fin:""")
        e("s_endpgm")

    def stats16(self, q, dst):
        e = self.e
        e(f"v_pk_add_f32 {vr(q,2)}, {vr(q,2)}, {vr(q+2,2)}")
        e(f"v_permlane16_swap_b32 v{q}, v{q+1}")
        e(f"v_add_f32 v{q}, v{q}, v{q+1}")
        e(f"v_mov_b32 v{q+1}, v{q}")
        e(f"v_permlane32_swap_b32 v{q}, v{q+1}")
        e(f"v_add_f32 v{q}, v{q}, v{q+1}")
        e(f"v_mov_b32 v{q+1}, v{q}")
        e(f"v_permlane16_swap_b32 v{q}, v{q+1}")
        self.stats_fin(q, dst)
    def stats_fin(self, q, dst):
        e = self.e
        e(f"v_mul_f32 v{dst}, 0x{f2u(1/640):x}, v{q}")
        e(f"v_mul_f32 v{q+1}, 0x{f2u(1/640):x}, v{q+1}")
        e(f"v_fma_f32 v{q+1}, -v{dst}, v{dst}, v{q+1}")
        e(f"v_max_f32 v{q+1}, 0, v{q+1}")
        e(f"v_add_f32 v{q+1}, 0x{f2u(1e-5):x}, v{q+1}")
        e(f"v_rsq_f32 v{dst+1}, v{q+1}")

    def prologue(self):
        e = self.e
        self.named = {}; self.m0_owner = None; self.t1_owner = None
        e("s_cmp_lt_u32 s2, 256\ns_cbranch_scc1 M_go\ns_endpgm")
        e.place("M_go")
        e("s_load_dwordx2 s[4:5], s[0:1], 72")
        e("s_load_dwordx2 s[8:9], s[0:1], 56")
        self.stamp("start")
        if self.stamps: e("s_memrealtime s[80:81]")
        e(f"""v_lshrrev_b32 v1, 6, v0
        v_readfirstlane_b32 s{sW}, v1
        v_and_b32 v3, 63, v0
        v_lshlrev_b32 v{vL16}, 4, v3
        v_add_u32 v{vL16B}, 20480, v{vL16}
        v_add_u32 v{vLDS1}, 0x10000, v{vL16}
        v_add_u32 v{vLDS2}, 0x20000, v{vL16}
        s_and_b32 s48, s2, 7
        s_lshr_b32 s49, s2, 3
        s_lshr_b32 s50, s49, 4
        s_lshl_b32 s48, s48, 1
        s_add_u32 s{sG}, s48, s50
        s_and_b32 s{sM}, s49, 15
        s_mov_b32 s6, {L.WS_USED}
        s_mov_b32 s7, 0x20000
        s_mov_b32 s10, 2621440
        s_mov_b32 s11, 0x20000
        s_mov_b32 s{sBUD}, 0x20000
        s_lshl_b32 s48, s{sG}, 3
        s_lshl_b32 s49, s{sW}, 1
        s_add_u32 s49, s49, s48
        s_mul_i32 s{sAX}, s49, 20480
        s_lshl_b32 s{sSTI}, s49, 10
        s_mul_i32 s{sH}, s49, 49152
        s_mul_i32 s50, s{sM}, 3072
        s_add_u32 s{sH}, s{sH}, s50
        s_lshl_b32 s50, s{sM}, 10
        s_add_u32 s{sOM}, s{sAX}, s50
        s_lshr_b32 s50, s{sM}, 2
        s_add_u32 s50, s50, 16
        s_lshl_b32 s50, s50, 10
        s_and_b32 s51, s{sM}, 3
        s_lshl_b32 s51, s51, 8
        s_add_u32 s50, s50, s51
        s_add_u32 s{sOX}, s{sAX}, s50
        s_lshl_b32 s{sM1}, s{sW}, 10
        s_lshl_b32 s{sM2}, s{sW}, 11
        s_mul_i32 s{sM3}, s{sW}, 3072
        s_mul_i32 s{sW1}, s{sM}, 163840
        s_add_u32 s{sW1}, s{sW1}, s{sM2}
        s_add_u32 s{sW1}, s{sW1}, {L.W1}
        s_mul_i32 s{sW3}, s{sM}, 245760
        s_add_u32 s{sW3}, s{sW3}, s{sM3}
        s_add_u32 s{sW3}, s{sW3}, {L.W3}
        s_and_b32 s52, s{sM}, 7
        s_lshr_b32 s53, s{sM}, 3
        s_mul_i32 s{sW2}, s52, 102400
        s_mul_i32 s50, s{sW}, 25600
        s_add_u32 s{sW2}, s{sW2}, s50
        s_add_u32 s{sW2}, s{sW2}, {L.W2}
        s_mul_i32 s{sW4}, s52, 245760
        s_mul_i32 s50, s{sW}, 61440
        s_add_u32 s{sW4}, s{sW4}, s50
        s_add_u32 s{sW4}, s{sW4}, {L.W4}
        s_lshl_b32 s{sFL}, s{sG}, 7
        s_add_u32 s{sFL}, s{sFL}, {L.FL}
        s_and_b32 s50, s{sG}, 7
        s_cmp_eq_u32 s50, 0
        s_cselect_b32 s54, 0, 1
        s_sub_u32 s50, s48, s54
        s_mul_i32 s{sHAL0}, s50, 20480
        s_add_u32 s{sHAL0}, s{sHAL0}, s{sM1}
        s_lshl_b32 s{sSTH0}, s50, 10
        s_add_u32 s{sSTH0}, s{sSTH0}, {L.ST[0]}
        s_sub_u32 s50, s{sG}, s54
        s_mul_i32 s{sHAL1}, s50, 20480
        s_add_u32 s{sHAL1}, s{sHAL1}, s{sM1}
        s_add_u32 s{sHAL1}, s{sHAL1}, {L.HX}
        s_lshl_b32 s{sSTH1}, s50, 10
        s_add_u32 s{sSTH1}, s{sSTH1}, {L.HST}
        s_lshl_b32 s{sFLP}, s50, 7
        s_add_u32 s{sFLP}, s{sFLP}, {L.FL + 8*2048}
        s_add_u32 s50, s54, s{sW}
        s_cmp_eq_u32 s50, 0
        s_cselect_b32 s{sFIRST}, 1, 0
        s_lshl_b32 s50, s53, 2
        s_add_u32 s48, s48, s50
        s_add_u32 s50, s50, s{sW}
        s_cmp_eq_u32 s50, 7
        s_cselect_b32 s{sHW}, 1, 0""")
        for t in range(4):
            e(f"""s_add_u32 s50, s{sW}, {1+t}
            s_and_b32 s50, s50, 3
            s_add_u32 s50, s50, s48
            s_mul_i32 s{sA2+t}, s50, 20480
            s_mul_i32 s51, s{sW}, 5120
            s_add_u32 s{sA2+t}, s{sA2+t}, s51
            s_mul_i32 s{sA4+t}, s50, 49152
            s_mul_i32 s51, s{sW}, 12288
            s_add_u32 s{sA4+t}, s{sA4+t}, s51""")
        e(f"""s_add_u32 s48, s48, s{sW}
        s_lshr_b32 s50, s52, 1
        s_and_b32 s51, s52, 1
        s_lshl_b32 s{sSTO}, s48, 10
        s_lshl_b32 s53, s50, 8
        s_add_u32 s{sSTO}, s{sSTO}, s53
        s_lshl_b32 s53, s51, 3
        s_add_u32 s{sSTO}, s{sSTO}, s53
        s_mul_i32 s{sXB}, s48, 20480
        s_mul_i32 s50, s50, 5120
        s_add_u32 s{sXB}, s{sXB}, s50
        s_mul_i32 s50, s51, 3072
        s_add_u32 s{sXA}, s{sXB}, s50
        s_add_u32 s{sXB}, s{sXB}, 2048
        s_add_u32 s{sXB}, s{sXB}, s53
        s_and_b32 s50, s48, 63
        s_lshl_b32 s50, s50, 5
        s_lshr_b32 s53, s48, 6
        s_add_u32 s50, s50, s53
        s_mul_i32 s50, s50, 1280
        s_mul_i32 s53, s52, 160
        s_add_u32 s50, s50, s53
        s_lshl_b32 s53, s51, 5
        s_add_u32 s{sOA}, s50, s53
        s_cmp_eq_u32 s51, 0
        s_cselect_b32 s53, 128, 0
        s_add_u32 s{sOB}, s50, s53""")
        e(f"""v_lshrrev_b32 v14, 4, v3
        v_and_b32 v15, 15, v3
        v_lshlrev_b32 v{vPOLL}, 2, v15
        v_mov_b32 v{vONE}, 1
        v_lshlrev_b32 v{vOX}, 4, v15
        v_lshl_add_u32 v{vOX}, v14, 3, v{vOX}
        v_cmp_eq_u32 s[{mG0}:{mG0+1}], 0, v14
        v_cmp_eq_u32 s[{mG1}:{mG1+1}], 1, v14
        v_cmp_gt_u32 s[{mLT2}:{mLT2+1}], 2, v14
        v_cmp_lt_u32 s[{mC8}:{mC8+1}], 7, v15
        v_and_b32 v16, 1, v14
        v_cmp_eq_u32 s[{mODD}:{mODD+1}], 1, v16
        s_min_u32 s50, s{sW}, 2
        s_add_u32 s50, s50, 2
        s_lshl_b32 s50, s50, 10
        v_add_u32 v{vHK}, s50, v{vL16}
        v_add_u32 v{vHK+1}, s50, v{vLDS1}
        v_add_u32 v{vHK+2}, s50, v{vLDS2}
        s_cmp_ge_u32 s{sW}, 2
        s_cselect_b64 s[{mH1}:{mH1+1}], s[{mC8}:{mC8+1}], 0
        v_lshrrev_b32 v17, 1, v14
        v_lshlrev_b32 v17, 8, v17
        v_lshl_add_u32 v17, v15, 4, v17
        s_movk_i32 s50, 20480
        v_mad_u32_u24 v{vA3}, v16, s50, v17
        s_mov_b32 s50, 49152
        v_mad_u32_u24 v{vHS}, v16, s50, v17
        v_lshl_add_u32 v{vST3}, v16, 10, v17
        v_lshrrev_b32 v18, 1, v14
        v_lshl_add_u32 v{vST3}, v18, 8, v{vST3}""")
        if self.cfg.get("fine"): self.stamp("scal")
        e(f"s_getreg_b32 s50, hwreg(HW_REG_XCC_ID)\ns_and_b32 s50, s50, 15\ns_or_b32 s50, s50, 0x100\nv_mov_b32 v16, s50")
        e(f"s_lshl_b32 s51, s{sM}, 2\ns_add_u32 s51, s51, s{sFL}\ns_add_u32 s51, s51, {15*2048}")
        e("s_mov_b64 exec, 1")
        e(f"buffer_store_dword v16, off, {WS}, s51 sc1")
        e("s_mov_b64 exec, -1")
        e(f"""s_mul_i32 s50, s{sM}, 25600
        s_add_u32 s50, s50, {L.CSP}
        s_lshl_b32 s51, s{sW}, 8
        s_add_u32 s51, s51, s50
        s_add_u32 s50, s50, 1024
        s_movk_i32 s52, 1280
        v_lshlrev_b32 v16, 4, v15
        v_mad_u32_u24 v16, v14, s52, v16""")
        CP = 176
        for k, sreg in enumerate((51, 50)):
            for i in range(5):
                e(f"buffer_load_dwordx4 {vr(CP+20*k+4*i,4)}, v16, {WS}, s{sreg} offen")
                if i < 4: e(f"s_add_u32 s{sreg}, s{sreg}, 5120")
        e(f"buffer_load_dwordx4 {vr(vXP,4)}, v{vL16}, {WS}, s{sXA} offen offset:{L.XA[0]}")
        e(f"buffer_load_dwordx4 {vr(vXP+4,4)}, v{vL16}, {WS}, s{sXA} offen offset:{L.XA[0]+1024}")
        e(f"buffer_load_dwordx2 {vr(vXP+8,2)}, v{vL16}, {WS}, s{sXB} offen offset:{L.XA[0]}")
        self.cs_pending = CP
    def cs_reduce(self):
        e = self.e; CP = self.cs_pending
        o = self.alloc("cs", CS_OFF, 1280); self.named["cs"] = o
        e(f"s_lshl_b32 s50, s{sW}, 8\ns_add_u32 s50, s50, {CS_OFF}")
        e(f"v_and_b32 v16, 0xf0, v{vL16}\nv_add_u32 v17, s50, v16\nv_add_u32 v16, {CS_OFF+1024}, v16")
        for k in range(2):
            b = CP + 20 * k
            for i in (1, 2, 3, 4):
                e(f"v_pk_add_f32 {vr(b,2)}, {vr(b,2)}, {vr(b+4*i,2)}")
                e(f"v_pk_add_f32 {vr(b+2,2)}, {vr(b+2,2)}, {vr(b+4*i+2,2)}")
            for sw in ("v_permlane16_swap_b32", "v_permlane32_swap_b32"):
                for r in range(4): e(f"v_mov_b32 v{b+4+r}, v{b+r}")
                for r in range(4): e(f"{sw} v{b+r}, v{b+4+r}")
                e(f"v_pk_add_f32 {vr(b,2)}, {vr(b,2)}, {vr(b+4,2)}")
                e(f"v_pk_add_f32 {vr(b+2,2)}, {vr(b+2,2)}, {vr(b+6,2)}")
            o.dsw = e(f"ds_write_b128 v{17-k}, {vr(b,4)}")

    def p1(self, l):
        e = self.e; N = self.named
        ACC, HACC, AR, BR, NB, DA = 16, 80, 88, 128, 12, 5
        STQ = 216
        STA, CQ = 228, 234
        STB, CSA, CSAH, CSV = 176, 200, 220, 224
        acc = lambda t, i: ACC + (2 * t + i) * 4
        def aload(k):
            def f0():
                r, imm = self.soff("a", sT + 3, sAX, L.XA[2 * l] + k * 1024)
                e(f"buffer_load_dwordx4 {vr(AR+(k%DA)*8,4)}, v{vL16}, {WS}, s{r} offen offset:{imm} sc1")
            def f1():
                r, imm = self.soff("a", sT + 3, sAX, L.XA[2 * l] + k * 1024)
                e(f"buffer_load_dwordx4 {vr(AR+(k%DA)*8+4,4)}, v{vL16B}, {WS}, s{r} offen offset:{imm} sc1")
            return [f0, f1]
        e(f"s_add_u32 s{sT}, s{sSTI}, {L.ST[2*l]}")
        if l == 0:
            for k in range(DA):
                for f in aload(k) + self.w1_chunk(l, k) + self.halo_block(l, k): f()
                if k == 0:
                    e(f"buffer_load_dwordx4 {vr(STQ,4)}, v{vL16}, {WS}, s{sT} offen sc1")
                    e(f"buffer_load_dwordx4 {vr(STQ+4,4)}, v{vL16}, {WS}, s{sT} offen offset:1024 sc1")
                    e(f"buffer_load_dwordx4 {vr(STQ+8,4)}, v{vL16}, {WS}, s{sSTH0} offen sc1")
            q = []
            for c in range(5, 17): q += self.w1_chunk(l, c)
            if self.cfg.get("fine"): self.stamp("issued")
            if self.cfg.get("fine"): e.wait(vm=11); self.stamp("csp")
            self.cs_reduce()
            if self.cfg.get("fine"): self.stamp("csred")
        else:
            for k in range(DA):
                for f in aload(k) + self.halo_block(l, k): f()
                if k == 0:
                    e(f"buffer_load_dwordx4 {vr(STQ,4)}, v{vL16}, {WS}, s{sT} offen sc1")
                    e(f"buffer_load_dwordx4 {vr(STQ+4,4)}, v{vL16}, {WS}, s{sT} offen offset:1024 sc1")
                    e(f"buffer_load_dwordx4 {vr(STQ+8,4)}, v{vL16}, {WS}, s{sSTH1} offen sc1")
            q = []
            for c in range(12, 17): q += self.w1_chunk(l, c)
        reads = []
        std = (vL16, vLDS1, vLDS2); hk = (vHK, vHK + 1, vHK + 2)
        mf = []; use = []
        for k in range(20):
            n0 = len(reads)
            cn = f"w1_{l}_{k}"
            for t in range(8): reads.append((cn, t * 1024, std, False))
            reads.append((f"ha_{l}_{k//4}", (k % 4) * 1024, std, k % 4 == 3))
            reads.append((cn, 0, hk, False))
            reads.append((cn, 3072, hk, True))
            fr = lambda n: vr(BR + 4 * (n % NB), 4)
            for t in range(8):
                for i in range(2):
                    A = vr(AR + (k % DA) * 8 + 4 * i, 4); C = vr(acc(t, i), 4) if k else "0"
                    a, b = (fr(n0 + t), A) if t <= 4 else (A, fr(n0 + t))
                    mf.append(f"v_mfma_f32_16x16x32_bf16 {vr(acc(t,i),4)}, {a}, {b}, {C}"); use.append([n0 + t])
            mf.append(f"v_mfma_f32_16x16x32_bf16 {vr(HACC,4)}, {fr(n0+9)}, {fr(n0+8)}, {vr(HACC,4) if k else 0}"); use.append([n0 + 8, n0 + 9])
            mf.append(f"v_mfma_f32_16x16x32_bf16 {vr(HACC+4,4)}, {fr(n0+8)}, {fr(n0+10)}, {vr(HACC+4,4) if k else 0}"); use.append([n0 + 8, n0 + 10])
        pre, post = {}, {}
        P = lambda d, i, f: d.setdefault(i, []).append(f)
        AH = 7
        tok = {}
        def mkread(n):
            def f():
                nm, off, bases, last = reads[n]
                tok[n] = self.rd(N[nm], BR + 4 * (n % NB), off, 4, bases, last)
            return f
        lastuse = {}; firstuse = {}
        for i, u in enumerate(use):
            for n in u: lastuse[n] = i; firstuse.setdefault(n, i)
        BARK = [k for k in range(20) if k % 2 == 0]
        def mkbar(k):
            def f():
                need = [N[f"w1_{l}_{c}"].vm for c in (k, k + 1)] + [N[f"ha_{l}_{c//4}"].vm for c in (k, k + 1)]
                e.wait(vm=max(need)); self.barrier()
            return f
        for n in range(AH, len(reads)):
            pos = max(firstuse[n - AH], lastuse.get(n - NB, 0))
            if n % 11 == 0 and (n // 11) in BARK: P(post, pos, mkbar(n // 11))
            P(post, pos, mkread(n))
        for n in range(0, len(reads), 2):
            P(pre, firstuse[n], (lambda n=n: e.wait(ds=tok.get(n + 1, tok[n]))))
        gate = {}
        for c in (17, 18, 19): gate[c] = self.w1_chunk(l, c)
        w2q = [self.w2_block(l, b)[0] for b in range(25)]
        extra = list(self.cfg.get(("p1extra", l), lambda s: [])(self))
        for k in range(20):
            base = 18 * k
            if k >= 1 and k + DA - 1 < 20:
                f0, f1 = aload(k + DA - 1); P(post, base + 1, f0); P(post, base + 4, f1)
            slots = [base + 7, base + 10, base + 13, base + 16]
            items = []
            if k in (3, 4, 5): items += gate[14 + k]
            while len(items) < 4 and q: items.append(q.pop(0))
            if k >= 5:
                while len(items) < (4 if k + DA - 1 >= 20 else 3) and w2q and (24 + 4 * (25 - len(w2q)) + 3) // 8 <= (k // 2) * 2 - 2 + (0 if k % 2 == 0 else 0):
                    items.append(w2q.pop(0))
            while len(items) < 4 and extra: items.append(extra.pop(0))
            for s, f in zip(slots, items): P(post, s, f)
        assert not q and not extra, (len(q), len(extra))
        def stats_all():
            for x in range(3): self.stats16(STQ + 4 * x, STA + 2 * x)
            so = self.alloc(f"stb{l}", STB_OFF, 1536, private=True); N["stb"] = so
            e(f"s_mul_i32 s{sT}, s{sW}, 384\ns_add_u32 s{sT}, s{sT}, {STB_OFF}")
            e(f"v_and_b32 v{STQ}, 0x100, v{vL16}\nv_lshrrev_b32 v{STQ}, 2, v{STQ}\nv_add3_u32 v{STQ}, v{STQ}, v{vPOLL}, s{sT}")
            e(f"v_lshrrev_b32 v{STQ+1}, 8, v{vL16}\nv_lshl_add_u32 v{STQ+1}, v{STQ+1}, 4, s{sT}")
            for x in range(3):
                e(f"v_cndmask_b32 v{STQ+2+x}, v{STA+2*x}, v{STA+2*x+1}, s[{mODD}:{mODD+1}]")
                so.dsw = e(f"ds_write_b32 v{STQ}, v{STQ+2+x} offset:{128*x}")
            e.wait(ds=so.dsw)
            for x in range(3):
                e(f"ds_read_b128 {vr(STB+8*x,4)}, v{STQ+1} offset:{128*x}")
                so.lastread = e(f"ds_read_b128 {vr(STB+8*x+4,4)}, v{STQ+1} offset:{128*x+64}")
            so.done = True
            c = f2u(20 ** -0.5 * LOG2E)
            e(f"v_mul_f32 v{CQ}, 0x{c:x}, v{STA+1}\nv_mul_f32 v{CQ+1}, 0x{c:x}, v{STA+3}")
        e.wait(vm=max(N[f"w1_{l}_{c}"].vm for c in (0, 1)))
        e.wait(vm=N[f"ha_{l}_0"].vm, ds=e.ds_seq)
        if self.cfg.get("fine"): self.stamp("landed")
        self.barrier()
        for n in range(AH): mkread(n)()
        stats_all()
        self.stamp(f"p1.{l}.loop")
        self.loop(mf, pre, post)
        for f in w2q: f()
        e.wait(ds=e.ds_seq)
        self.barrier()
        self.stamp(f"p1.{l}.epi")
        for f in self.cfg.get(("p1post", l), lambda s: [])(self): f()
        cs = N["cs"]
        T0 = 172
        e(f"v_lshrrev_b32 v{T0}, 8, v{vL16}\nv_lshlrev_b32 v{T0}, 4, v{T0}\nv_add_u32 v{T0}, {CS_OFF}, v{T0}")
        e(f"v_add_u32 v{T0+1}, {CS_OFF}, v{vPOLL}")
        e(f"s_min_u32 s{sT}, s{sW}, 2\ns_lshl_b32 s{sT}, s{sT}, 6")
        e(f"v_add_u32 v{T0+2}, s{sT}, v{T0}\nv_add_u32 v{T0+3}, s{sT}, v{T0+1}")
        for t in range(5): e(f"ds_read_b128 {vr(CSA+4*t,4)}, v{T0} offset:{64*t}")
        e(f"ds_read_b128 {vr(CSAH,4)}, v{T0+2} offset:128")
        for t in range(3): e(f"ds_read_b32 v{CSV+t}, v{T0+1} offset:{320+64*t}")
        e(f"ds_read_b32 v{CSV+3}, v{T0+3} offset:320")
        BO, BP, BP0 = 88, 92, 96
        QS, KS, VS, T4P, M4 = 100, 116, 134, 152, 156
        e(f"v_lshrrev_b32 v{T0}, 8, v{vL16}\nv_lshrrev_b32 v{T0+1}, 2, v{vPOLL}\nv_lshlrev_b32 v{T0}, 2, v{T0}\nv_sub_u32 v{T0}, v{T0+1}, v{T0}")
        e(f"v_mov_b32 v{T0+1}, 0x{f2u(-1e30):x}")
        for r in range(4):
            e(f"v_subrev_u32 v{T0+2}, {r}, v{T0}")
            e(f"v_cmp_gt_u32 vcc, 8, v{T0+2}")
            e(f"v_cndmask_b32 v{BO+r}, v{T0+1}, 0, vcc") if False else e(f"v_cndmask_b32_e64 v{BO+r}, v{T0+1}, 0, vcc")
            e(f"v_cmp_gt_i32 vcc, -8, v{T0+2}")
            e(f"v_cndmask_b32_e64 v{BP+r}, v{T0+1}, 0, vcc")
        e(f"s_cmp_eq_u32 s{sFIRST}, 1\ns_cselect_b64 vcc, -1, 0")
        for r in range(4): e(f"v_cndmask_b32 v{BP0+r}, v{BP+r}, v{T0+1}, vcc")
        for i in range(2): e(f"v_cndmask_b32_e64 v{M4+i}, v{STA+2*i+1}, 1.0, s[{mLT2}:{mLT2+1}]")
        def foldA(a, cs4, st, mul, dst):
            for h in range(2):
                e(f"v_pk_fma_f32 {vr(a+2*h,2)}, {vr(cs4+2*h,2)}, {vr(st,2)}, {vr(a+2*h,2)} op_sel_hi:[1,0,1] neg_lo:[0,1,0] neg_hi:[0,1,0]")
            if mul:
                for h in range(2):
                    e(f"v_pk_mul_f32 {vr(a+2*h,2)}, {vr(a+2*h,2)}, {vr(mul[0],2)} op_sel:[0,{mul[1]}] op_sel_hi:[1,{mul[1]}]")
            for d in dst:
                for h in range(2): e(f"v_cvt_pk_bf16_f32 v{d+h}, v{a+2*h}, v{a+2*h+1}")
        def foldB(a, csr, stb, dst):
            pr, sel = csr & ~1, csr & 1
            for h in range(2):
                e(f"v_pk_fma_f32 {vr(a+2*h,2)}, {vr(stb+2*h,2)}, {vr(pr,2)}, {vr(a+2*h,2)} op_sel:[0,{sel},0] op_sel_hi:[1,{sel},1] neg_lo:[1,0,0] neg_hi:[1,0,0]")
            for h in range(2):
                e(f"v_pk_mul_f32 {vr(a+2*h,2)}, {vr(a+2*h,2)}, {vr(stb+4+2*h,2)}")
            for h in range(2): e(f"v_cvt_pk_bf16_f32 v{dst+h}, v{a+2*h}, v{a+2*h+1}")
        ks = lambda x: KS + 6 * x
        vs = lambda t, x: VS + 6 * (t - 5) + 2 * x
        ONES = 158
        e(f"v_mov_b32 v{ONES}, 0x3f803f80")
        xb = self.alloc(f"xb{l}", XB_OFF, 15360)
        HP = 160
        foldA(HACC, CSAH, STA + 4, (STA + 4, 1), [HP])
        foldB(HACC + 4, CSV + 3, STB + 16, HP + 2)
        for h in range(2): e(f"v_cndmask_b32 v{HP+2+h}, v{HP+2+h}, v{ONES}, s[{mH1}:{mH1+1}]")
        e(f"""v_lshrrev_b32 v{T0}, 1, v{vL16}
        s_cmp_ge_u32 s{sW}, 2
        s_cselect_b32 s{sT}, 256, 0
        s_cselect_b32 s{sT+4}, 512, s{sM1}
        v_xor_b32 v{T0+1}, s{sT}, v{T0}
        s_add_u32 s{sT+4}, s{sT+4}, {XB_OFF}
        v_add_u32 v{T0+1}, s{sT+4}, v{T0+1}
        s_min_u32 s{sT}, s{sW}, 2
        s_lshl_b32 s{sT}, s{sT}, 9
        s_add_u32 s{sT}, s{sT}, {XB_OFF+1536}
        v_add_u32 v{T0+2}, s{sT}, v{T0}
        s_add_u32 s{sT}, s{sM3}, {XB_OFF}
        v_add_u32 v{T0}, s{sT}, v{T0}""")
        e(f"ds_write_b64 v{T0+1}, {vr(HP,2)}")
        e(f"ds_write_b64 v{T0+2}, {vr(HP+2,2)}")
        def kv(i):
            foldA(acc(2, i), CSA + 8, STA + 2 * i, (STA + 2 * i, 1), [ks(1 + i)])
            foldA(acc(3, i), CSA + 12, STA + 2 * i, (STA + 2 * i, 1), [ks(1 + i) + 4])
            foldA(acc(4, i), CSA + 16, STA + 2 * i, (M4, i), [T4P + 2 * i, ks(1 + i) + 2])
            for h in range(2):
                e(f"v_cndmask_b32_e64 v{QS+8*i+2+h}, 0, v{T4P+2*i+h}, s[{mG0}:{mG0+1}]")
                e(f"v_cndmask_b32_e64 v{QS+8*i+4+h}, 0, v{T4P+2*i+h}, s[{mG1}:{mG1+1}]")
            for t in (5, 6, 7): foldB(acc(t, i), CSV + t - 5, STB + 8 * i, vs(t, 1 + i))
            for h in range(2): e(f"v_permlane32_swap_b32 v{T4P+2*i+h}, v{ks(1+i)+2+h}")
            for h in range(2): e(f"v_cndmask_b32 v{vs(7,1+i)+h}, v{vs(7,1+i)+h}, v{ONES}, s[{mC8}:{mC8+1}]")
        kv(1)
        for p in range(3): e(f"ds_write_b64 v{T0}, {vr(ks(2)+2*p,2)} offset:{3072+512*p}")
        for p in range(3): xb.dsw = e(f"ds_write_b64 v{T0}, {vr(vs(5+p,2),2)} offset:{3072+1536+512*p}")
        kv(0)
        e.wait(ds=xb.dsw); self.barrier()
        for p in range(3): e(f"ds_read_b64 {vr(ks(0)+2*p,2)}, v{T0} offset:{512*p}")
        for p in range(3): xb.lastread = e(f"ds_read_b64 {vr(vs(5+p,0),2)}, v{T0} offset:{1536+512*p}")
        xb.done = True
        for i in range(2):
            foldA(acc(0, i), CSA, STA + 2 * i, None, [QS + 8 * i])
            foldA(acc(1, i), CSA + 4, STA + 2 * i, None, [QS + 8 * i + 6])
        SS, PP, OM, OXR, MM = 16, 48, 64, 160, 152
        combos = [(0, 0), (0, 1), (1, 0), (1, 1)]
        for c in (2, 3, 0, 1):
            i, h = combos[c]
            e(f"v_mfma_f32_16x16x32_bf16 {vr(SS+8*c+4,4)}, {vr(ks(1+i)+2*h,4)}, {vr(QS+8*i+4*h,4)}, {vr(BO,4)}")
            e(f"v_mfma_f32_16x16x32_bf16 {vr(SS+8*c,4)}, {vr(ks(i)+2*h,4)}, {vr(QS+8*i+4*h,4)}, {vr(BP if i else BP0,4)}")
        CQS = 156
        e(f"v_cndmask_b32 v{CQS}, v{CQ+1}, v{CQ}, s[{mLT2}:{mLT2+1}]")
        for st in range(4):
            for c in (2, 3, 0, 1):
                s = SS + 8 * c
                if st == 0: e(f"v_max3_f32 v{MM+c}, v{s}, v{s+1}, v{s+2}")
                elif st < 3: e(f"v_max3_f32 v{MM+c}, v{MM+c}, v{s+1+2*st}, v{s+2+2*st}")
                else: e(f"v_max_f32 v{MM+c}, v{MM+c}, v{s+7}")
        e(f"""v_permlane16_swap_b32 v{MM+2}, v{MM+3}
        v_permlane16_swap_b32 v{MM}, v{MM+1}
        v_max_f32 v{MM+2}, v{MM+2}, v{MM+3}
        v_max_f32 v{MM}, v{MM}, v{MM+1}
        v_permlane32_swap_b32 v{MM}, v{MM+2}
        v_max_f32 v{MM}, v{MM}, v{MM+2}
        v_mul_f32_e64 v{MM}, -v{MM}, v{CQS}
        v_mov_b32 v{MM+2}, v{MM}
        v_permlane32_swap_b32 v{MM}, v{MM+2}
        v_mov_b32 v{MM+1}, v{MM}
        v_mov_b32 v{MM+3}, v{MM+2}
        v_permlane16_swap_b32 v{MM}, v{MM+1}
        v_permlane16_swap_b32 v{MM+2}, v{MM+3}""")
        for c in range(4):
            i, h = combos[c]; s = SS + 8 * c
            for k in range(4):
                e(f"v_pk_fma_f32 {vr(s+2*k,2)}, {vr(s+2*k,2)}, {vr(CQ,2)}, {vr(MM+(c&~1),2)} op_sel:[0,{i},{c&1}] op_sel_hi:[1,{i},{c&1}]")
            for k in range(8): e(f"v_exp_f32 v{s+k}, v{s+k}")
            for k in range(4): e(f"v_cvt_pk_bf16_f32 v{PP+4*c+k}, v{s+2*k}, v{s+2*k+1}")
            e(f"v_mfma_f32_16x16x32_bf16 {vr(OXR+4*c,4)}, {vr(vs(7,i),4)}, {vr(PP+4*c,4)}, 0")
            e(f"v_mfma_f32_16x16x32_bf16 {vr(OM+4*c,4)}, {vr(vs(5+h,i),4)}, {vr(PP+4*c,4)}, 0")
        INV, OUTM, OUTX = 100, 104, 112
        e(f"s_add_u32 s{sT}, s{sOM}, {L.OA[l]}\ns_add_u32 s{sT+4}, s{sOX}, {L.OA[l]}")
        e(f"v_add_u32 v{OUTX+8}, 20480, v{vOX}")
        for i in range(2):
            for h in range(2):
                c = 2 * i + h
                e(f"v_mov_b32 v{INV+c}, v{OXR+4*c}")
            for h in range(2): e(f"v_permlane32_swap_b32 v{OXR+4*(2*i+h)}, v{INV+2*i+h}")
            for h in range(2): e(f"v_rcp_f32 v{INV+2*i+h}, v{INV+2*i+h}")
            for r in range(4): e(f"v_cndmask_b32 v{OXR+8*i+r}, v{OXR+8*i+4+r}, v{OXR+8*i+r}, s[{mG0}:{mG0+1}]")
            for h in range(2):
                c = 2 * i + h
                for k in range(2): e(f"v_pk_mul_f32 {vr(OM+4*c+2*k,2)}, {vr(OM+4*c+2*k,2)}, {vr(INV+2*i,2)} op_sel:[0,{h}] op_sel_hi:[1,{h}]")
                for k in range(2): e(f"v_cvt_pk_bf16_f32 v{OUTM+4*i+2*h+k}, v{OM+4*c+2*k}, v{OM+4*c+2*k+1}")
            e(f"buffer_store_dwordx4 {vr(OUTM+4*i,4)}, v{vL16B if i else vL16}, {WS}, s{sT} offen")
            e(f"v_cndmask_b32 v{OUTX+4+2*i}, v{INV+2*i+1}, v{INV+2*i}, s[{mG0}:{mG0+1}]")
            for k in range(2): e(f"v_pk_mul_f32 {vr(OXR+8*i+2*k,2)}, {vr(OXR+8*i+2*k,2)}, {vr(OUTX+4+2*i,2)} op_sel_hi:[1,0]")
            for k in range(2): e(f"v_cvt_pk_bf16_f32 v{OUTX+2*i+k}, v{OXR+8*i+2*k}, v{OXR+8*i+2*k+1}")
        e("s_mov_b32 exec_hi, 0")
        e(f"buffer_store_dwordx2 {vr(OUTX,2)}, v{vOX}, {WS}, s{sT+4} offen")
        e(f"buffer_store_dwordx2 {vr(OUTX+2,2)}, v{OUTX+8}, {WS}, s{sT+4} offen")
        e("s_mov_b32 exec_hi, -1")
        e(f"v_add_u32 v16, s{sM1}, v{vL16}\nv_add_u32 v17, s{sM1}, v{vLDS1}")
        for b in range(25): self.rd(N[f"w2_{l}_{b}"], 128 + 4 * b, 0, 4, (16, 17, 17), True)
        self.stamp(f"p1.{l}.done")
        if l == 0:
            e.wait_all()
            self.poll(sFL, 15 * 2048, vPOLL, 18, acquire=False)
            e(f"v_readfirstlane_b32 s{sT}, v18")
            e(f"v_cmp_ne_u32 vcc, s{sT}, v18")
            e("s_cmp_eq_u64 vcc, 0")
            e(f"s_cselect_b32 s{sLOC}, 1, 0")
            if self.cfg.get("force_slow"): e(f"s_mov_b32 s{sLOC}, 0")
        self.signal(4 * l)

    def pk(self, l, four):
        e = self.e; N = self.named
        NK = 12 if four else 5
        tag = f"p{4 if four else 2}.{l}"
        ACC = (16, 36); AR = 56
        NA = 18 if not four else 24
        if not four: NA = 18
        PRT = 152 if four else 56
        abase = (L.HA if four else L.OA)[l]; sA = sA4 if four else sA2
        wf = (lambda ks, t: ar(4 * (ks * 5 + t), 4)) if four else (lambda ks, t: vr(128 + 4 * (ks * 5 + t), 4))
        nfr = 4 * NK
        def aload(n):
            def f():
                r, imm = self.soff("a", sT + 3, sA + n // NK, abase + (n % NK) * 1024)
                e(f"buffer_load_dwordx4 {vr(AR+4*(n%NA),4)}, v{vL16}, {WS}, s{r} offen offset:{imm} sc1")
            return f
        for n in range(NA): aload(n)()
        VW, VR = 228, 231
        for t in range(3):
            e(f"s_add_u32 s{sT}, s{sW}, {1+t}\ns_and_b32 s{sT}, s{sT}, 3\ns_mul_i32 s{sT}, s{sT}, 15360\ns_add_u32 s{sT}, s{sT}, {PART_OFF + t*5120}")
            e(f"v_add_u32 v{VW+t}, s{sT}, v{vL16}")
        e(f"s_mul_i32 s{sT}, s{sW}, 15360\ns_add_u32 s{sT}, s{sT}, {PART_OFF}\nv_add_u32 v{VR}, s{sT}, v{vL16}")
        po = self.alloc(f"part{tag}", PART_OFF, 61440)
        mf = []; pre = {}; post = {}
        P = lambda d, i, f: d.setdefault(i, []).append(f)
        for t in range(4):
            for ks in range(NK):
                n = t * NK + ks
                for tp in range(5):
                    a = ACC[t & 1] + 4 * tp
                    C = vr(a, 4) if (ks or t == 3) else "0"
                    mf.append(f"v_mfma_f32_16x16x32_bf16 {vr(a,4)}, {wf(ks,tp)}, {vr(AR+4*(n%NA),4)}, {C}")
                if n + NA < nfr: P(post, 5 * n + 5, aload(n + NA))
        R = 5 * NK
        def pw(t, tp):
            def f(): po.dsw = e(f"ds_write_b128 v{VW+t}, {vr(ACC[t&1]+4*tp,4)} offset:{1024*tp}")
            return f
        for t in range(3):
            for tp in range(5): P(post, R * (t + 1) + 3 + 2 * tp, pw(t, tp))
        ux = []
        for k in range(10):
            ux.append(f"v_lshlrev_b32 v{ACC[1]+2*k}, 16, v{vXP+k}")
            ux.append(f"v_and_b32 v{ACC[1]+2*k+1}, 0xffff0000, v{vXP+k}")
        for k, s in enumerate(ux): P(post, 2 * R + 12 + k // 2, s)
        def bar():
            e.wait(ds=po.dsw); self.barrier()
        P(post, 3 * R + 12, bar)
        if not four: prt = lambda s, tp: (AR + 8 + 20 * s + 4 * tp) if s < 2 else ACC[0] + 4 * tp
        else: prt = lambda s, tp: PRT + 20 * s + 4 * tp
        def pr(s, tp):
            def f():
                t = e(f"ds_read_b128 {vr(prt(s,tp),4)}, v{VR} offset:{5120*s+1024*tp}"); po.lastread = t
                assert po.landed is not None
            return f
        items = [pr(s, tp) for tp in range(5) for s in range(3)]
        for k, f in enumerate(items): P(post, 3 * R + 12 + (k // 2 if not four else k), f)
        adds = []
        for tp in range(5):
            for h in range(2):
                adds.append(f"v_pk_add_f32 {vr(prt(0,tp)+2*h,2)}, {vr(prt(0,tp)+2*h,2)}, {vr(prt(1,tp)+2*h,2)}")
                adds.append(f"v_pk_add_f32 {vr(prt(0,tp)+2*h,2)}, {vr(prt(0,tp)+2*h,2)}, {vr(prt(2,tp)+2*h,2)}")
        if four:
            for k, s in enumerate(adds): P(post, 3 * R + 34 + k, s)
            adds = []
        extra = list(self.cfg.get((tag[:2] + "extra", l), lambda s: [])(self))
        k = 3
        while extra:
            assert k < 3 * R, "too many extras"
            P(post, k, extra.pop(0)); k += self.cfg.get("pkstep", 5)
        self.stamp(tag + ".loop")
        self.loop(mf, pre, post)
        po.done = True
        self.stamp(tag + ".epi")
        for s in adds: e(s)
        A1 = ACC[1]
        for tp in range(5):
            for h in range(2): e(f"v_pk_add_f32 {vr(A1+4*tp+2*h,2)}, {vr(A1+4*tp+2*h,2)}, {vr(prt(0,tp)+2*h,2)}")
            for h in range(2): e(f"v_cvt_pk_bf16_f32 v{vXP+2*tp+h}, v{A1+4*tp+2*h}, v{A1+4*tp+2*h+1}")
        if four and l == 1:
            e(f"v_lshrrev_b32 v16, 8, v{vL16}\nv_lshrrev_b32 v17, 2, v{vPOLL}\ns_movk_i32 s{sT}, 2560\nv_lshlrev_b32 v16, 3, v16\nv_mad_u32_u24 v16, v17, s{sT}, v16")
            for tp in range(4): e(f"buffer_store_dwordx2 {vr(vXP+2*tp,2)}, v16, {OUT}, s{sOA} offen offset:{32*tp}")
            e(f"buffer_store_dwordx2 {vr(vXP+8,2)}, v16, {OUT}, s{sOB} offen")
            return
        xi = 2 * l + (2 if four else 1)
        e(f"s_add_u32 s{sT}, s{sXA}, {L.XA[xi]}\ns_add_u32 s{sT+4}, s{sXB}, {L.XA[xi]}\ns_add_u32 s{sT+5}, s{sSTO}, {L.ST[xi]}")
        e(f"buffer_store_dwordx4 {vr(vXP,4)}, v{vL16}, {WS}, s{sT} offen")
        e(f"buffer_store_dwordx4 {vr(vXP+4,4)}, v{vL16}, {WS}, s{sT} offen offset:1024")
        e(f"buffer_store_dwordx2 {vr(vXP+8,2)}, v{vL16}, {WS}, s{sT+4} offen")
        e("v_mov_b32 v20, 0x3f803f80")
        for k in range(10):
            c0 = f"v{16+2*(k&1)}" if k >= 2 else "0"; c1 = f"v{17+2*(k&1)}" if k >= 2 else "0"
            e(f"v_dot2_f32_bf16 v{16+2*(k&1)}, v{vXP+k}, v20, {c0}")
            e(f"v_dot2_f32_bf16 v{17+2*(k&1)}, v{vXP+k}, v{vXP+k}, {c1}")
        e("""v_pk_add_f32 v[16:17], v[16:17], v[18:19]
        v_permlane16_swap_b32 v16, v17
        v_add_f32 v16, v16, v17
        v_mov_b32 v17, v16
        v_permlane32_swap_b32 v16, v17
        v_add_f32 v16, v16, v17
        v_mov_b32 v17, v16
        v_permlane16_swap_b32 v16, v17
        s_mov_b32 exec_lo, 0xffff
        s_mov_b32 exec_hi, 0""")
        e(f"buffer_store_dwordx2 v[16:17], v{vL16}, {WS}, s{sT+5} offen")
        e("s_mov_b64 exec, -1")
        self.stamp(tag + ".done")
        self.signal(4 * l + (3 if four else 1))
        if four:
            lab = e.label("HW")
            e(f"s_cmp_eq_u32 s{sHW}, 0\ns_cbranch_scc1 {lab}")
            d = f"""s_mul_i32 s{sT+6}, s{sG}, {7*20480}
            s_add_u32 s{sT+6}, s{sT+6}, {7*20480}
            s_sub_u32 s{sT}, s{sXA}, s{sT+6}
            s_add_u32 s{sT}, s{sT}, {L.HX}
            s_sub_u32 s{sT+4}, s{sXB}, s{sT+6}
            s_add_u32 s{sT+4}, s{sT+4}, {L.HX}
            buffer_store_dwordx4 {vr(vXP,4)}, v{vL16}, {WS}, s{sT} offen sc1
            buffer_store_dwordx4 {vr(vXP+4,4)}, v{vL16}, {WS}, s{sT} offen offset:1024 sc1
            buffer_store_dwordx2 {vr(vXP+8,2)}, v{vL16}, {WS}, s{sT+4} offen sc1
            s_mul_i32 s{sT+6}, s{sG}, {7*1024}
            s_add_u32 s{sT+6}, s{sT+6}, {7*1024}
            s_sub_u32 s{sT+5}, s{sSTO}, s{sT+6}
            s_add_u32 s{sT+5}, s{sT+5}, {L.HST}
            s_mov_b32 exec_lo, 0xffff
            s_mov_b32 exec_hi, 0
            buffer_store_dwordx2 v[16:17], v{vL16}, {WS}, s{sT+5} offen sc1
            s_waitcnt vmcnt(0)
            s_lshl_b32 s{sT}, s{sM}, 2
            s_add_u32 s{sT}, s{sT}, s{sFL}
            s_add_u32 s{sT}, s{sT}, {8*2048}
            s_mov_b64 exec, 1
            buffer_store_dword v{vONE}, off, {WS}, s{sT} sc1
            s_mov_b64 exec, -1"""
            for ln in d.split("\n"): e.raw(ln.strip())
            e.place(lab)

    def p3(self, l):
        e = self.e; N = self.named
        ACC, AR, DA, BR, NB, AH = 16, 112, 6, 160, 8, 6
        STQ, MU, C3, SG = 192, 200, 202, 203
        xi = 2 * l + 1
        def aload(k, ee):
            def f():
                r, imm = self.soff("a", sT + 3, sAX, L.XA[xi] + k * 1024 + ee * 512)
                e(f"buffer_load_dwordx4 {vr(AR+(k%DA)*8+4*ee,4)}, v{vA3}, {WS}, s{r} offen offset:{imm} sc1")
            return f
        e(f"s_add_u32 s{sT}, s{sSTI}, {L.ST[xi]}")
        for k in range(DA):
            aload(k, 0)(); aload(k, 1)()
            if k == 0:
                e(f"buffer_load_dwordx4 {vr(STQ,4)}, v{vST3}, {WS}, s{sT} offen sc1")
                e(f"buffer_load_dwordx4 {vr(STQ+4,4)}, v{vST3}, {WS}, s{sT} offen offset:256 sc1")
        q = []
        for c in range(20):
            if f"w3_{l}_{c}" not in N: q.append((c, self.w3_chunk(l, c)))
        mf = []; pre = {}; post = {}; tok = {}
        P = lambda d, i, f: d.setdefault(i, []).append(f)
        for k in range(20):
            for j in range(12):
                n = 12 * k + j; a = ACC + 16 * (j % 6)
                mf.append(f"v_mfma_f32_32x32x16_bf16 {vr(a,16)}, {vr(BR+4*(n%NB),4)}, {vr(AR+(k%DA)*8+4*(j//6),4)}, {vr(a,16) if n >= 6 else 0}")
        def mkread(n):
            def f(): tok[n] = self.rd(N[f"w3_{l}_{n//12}"], BR + 4 * (n % NB), (n % 12) * 1024, 4, last=(n % 12 == 11))
            return f
        def mkbar(k):
            def f():
                e.wait(vm=max(N[f"w3_{l}_{c}"].vm for c in (k, k + 1))); self.barrier()
            return f
        for n in range(AH, 240):
            if n % 24 == 0: P(post, n - AH, mkbar(n // 12))
            P(post, n - AH, mkread(n))
        for n in range(0, 240, 2): P(pre, n, (lambda n=n: e.wait(ds=tok[n + 1])))
        extra = list(self.cfg.get(("p3extra", l), lambda s: [])(self))
        for k in range(20):
            b = 12 * k
            if k >= 1 and k + DA - 1 < 20:
                P(post, b + 0, aload(k + DA - 1, 0)); P(post, b + 2, aload(k + DA - 1, 1))
            slots = [b + 4, b + 6, b + 8, b + 10, b + 1, b + 3, b + 5, b + 7, b + 9, b + 11] if k + DA - 1 < 20 else [b + i for i in (0, 2, 4, 6, 8, 10, 1, 3, 5, 7)]
            items = []
            if q:
                c = q[0][0]
                prev = self.W3SLOT[c] if c >= 13 else None
                if prev is None or k >= ((prev + 3) // 2) * 2: items += q.pop(0)[1]
            nmax = self.cfg.get("p3rate", 4)
            while len(items) < nmax and extra and extra[0][0] <= k: items.append(extra.pop(0)[1])
            for s, f in sorted(zip(slots, range(len(items)))): pass
            for s, f in zip(sorted(slots[:len(items)]), items): P(post, s, f)
        assert not q and not extra, (len(q), len(extra))
        e.wait(vm=max(N[f"w3_{l}_{c}"].vm for c in (0, 1)), ds=e.ds_seq)
        self.barrier()
        for n in range(AH): mkread(n)()
        e(f"v_pk_add_f32 {vr(STQ,2)}, {vr(STQ,2)}, {vr(STQ+2,2)}")
        e(f"v_pk_add_f32 {vr(STQ+4,2)}, {vr(STQ+4,2)}, {vr(STQ+6,2)}")
        e(f"v_pk_add_f32 {vr(STQ,2)}, {vr(STQ,2)}, {vr(STQ+4,2)}")
        e(f"v_mov_b32 v{STQ+2}, v{STQ}\nv_mov_b32 v{STQ+3}, v{STQ+1}")
        e(f"v_permlane32_swap_b32 v{STQ}, v{STQ+2}\nv_permlane32_swap_b32 v{STQ+1}, v{STQ+3}")
        e(f"v_pk_add_f32 {vr(STQ,2)}, {vr(STQ,2)}, {vr(STQ+2,2)}")
        self.stats_fin(STQ, MU)
        e(f"v_mul_f32 v{C3}, 0x{f2u(-LOG2E):x}, v{MU+1}")
        e(f"v_mul_f32 v{SG}, v{STQ+1}, v{MU+1}")
        e(f"v_lshrrev_b32 v{STQ}, 9, v{vL16}\nv_lshlrev_b32 v{STQ}, 4, v{STQ}\nv_add_u32 v{STQ}, {CS_OFF+512}, v{STQ}")
        self.stamp(f"p3.{l}.loop")
        self.loop(mf, pre, post)
        self.stamp(f"p3.{l}.epi")
        e(f"s_add_u32 s{sT}, s{sH}, {L.HA[l]}")
        CSR = 112
        def csload(T):
            for m_ in range(2):
                for i in range(4): e(f"ds_read_b128 {vr(CSR+32*(T&1)+16*m_+4*i,4)}, v{STQ} offset:{(2*T+m_)*128+32*i}")
        csload(0); csload(1)
        OUTR = 204
        for T in range(3):
            G, U, c = ACC + 32 * T, ACC + 32 * T + 16, CSR + 32 * (T & 1)
            for k in range(8):
                e(f"v_pk_fma_f32 {vr(G+2*k,2)}, {vr(c+2*k,2)}, {vr(MU,2)}, {vr(G+2*k,2)} op_sel_hi:[1,0,1] neg_lo:[0,1,0] neg_hi:[0,1,0]")
            for k in range(8):
                e(f"v_pk_mul_f32 {vr(G+2*k,2)}, {vr(G+2*k,2)}, {vr(C3,2)} op_sel_hi:[1,0]")
            for k in range(8):
                e(f"v_exp_f32 v{G+2*k}, v{G+2*k}\nv_exp_f32 v{G+2*k+1}, v{G+2*k+1}")
                e(f"v_pk_fma_f32 {vr(U+2*k,2)}, {vr(c+16+2*k,2)}, {vr(MU,2)}, {vr(U+2*k,2)} op_sel_hi:[1,0,1] neg_lo:[0,1,0] neg_hi:[0,1,0]")
            if T == 0: csload(2)
            for k in range(8):
                e(f"v_pk_fma_f32 {vr(G+2*k,2)}, {vr(G+2*k,2)}, {vr(C3,2)}, {vr(C3,2)} op_sel:[0,1,1] op_sel_hi:[1,1,1]")
            for ip in range(2):
                o = OUTR + 4 * ((2 * T + ip) % 4)
                for k in range(4 * ip, 4 * ip + 4):
                    e(f"v_rcp_f32 v{G+2*k}, v{G+2*k}\nv_rcp_f32 v{G+2*k+1}, v{G+2*k+1}")
                for k in range(4 * ip, 4 * ip + 4):
                    e(f"v_pk_mul_f32 {vr(U+2*k,2)}, {vr(U+2*k,2)}, {vr(G+2*k,2)}")
                for k in range(4 * ip, 4 * ip + 4):
                    e(f"v_cvt_pk_bf16_f32 v{o+k-4*ip}, v{U+2*k}, v{U+2*k+1}")
                e(f"buffer_store_dwordx4 {vr(o,4)}, v{vHS}, {WS}, s{sT} offen offset:{T*1024+ip*512}")
        self.stamp(f"p3.{l}.done")
        self.signal(4 * l + 2)

    def build(self):
        e = self.e
        self.prologue()
        for l in range(2):
            if l == 1:
                self.poll(sFL, 3 * 2048, vPOLL, 18)
                e(f"v_and_b32 v19, 28, v{vPOLL}\nv_add_u32 v19, 32, v19")
                self.poll(sFLP, 0, 19, 18, acquire=False); self.stamp("polled")
            self.p1(l)
            if self.stop == f"p1.{l}": break
            self.poll(sFL, (4 * l) * 2048, vPOLL, 18); self.stamp("polled")
            self.pk(l, False)
            if self.stop == f"p2.{l}": break
            self.poll(sFL, (4 * l + 1) * 2048, vPOLL, 18); self.stamp("polled")
            self.p3(l)
            if self.stop == f"p3.{l}": break
            self.poll(sFL, (4 * l + 2) * 2048, vPOLL, 18); self.stamp("polled")
            self.pk(l, True)
            if self.stop == f"p4.{l}": break
        self.finish()
        return e

def flat(ll): return [x for l in ll for x in l]
def default_cfg():
    cfg = {}
    for l in range(2):
        cfg[("p1post", l)] = lambda s, l=l: flat(s.w3_chunk(l, c) for c in (0, 1))
        cfg[("p2extra", l)] = lambda s, l=l: flat(s.w3_chunk(l, c) for c in range(2, 8))
    cfg["pkstep"] = 4
    def p3x(s):
        out = []
        w4 = [s.w4_load(n)[0] for n in range(60)]
        w1 = []
        for c in range(12):
            last = max({0: 13, 1: 14, 2: 15}.get(sl, sl) for sl in ((8 * c) // 12, (8 * c + 7) // 12))
            for f in s.w1_chunk(1, c): w1.append((((last + 3) // 2) * 2, f))
        w1.sort(key=lambda x: x[0])
        ev = [(0, f) for f in w4]
        return ev + w1
    cfg[("p3extra", 0)] = p3x
    cfg["p3rate"] = 6
    return cfg

if __name__ == "__main__":
    import sys
    from asmlib import wrap, NAME
    from k0 import gen_k0, RS
    import json
    import subprocess
    def code_bytes(body):
        open("cb.s", "w").write('.amdgcn_target "amdgcn-amd-amdhsa--gfx950"\n.text\n' + body)
        subprocess.check_call(["clang", "-x", "assembler", "-target", "amdgcn-amd-amdhsa", "-mcpu=gfx950", "-c", "cb.s", "-o", "cb.o"])
        subprocess.check_call(["llvm-objcopy", "-O", "binary", "-j", ".text", "cb.o", "cb.bin"])
        import os
        return os.path.getsize("cb.bin")
    def make(path, stamps=False, stop=None, **over):
        cfg = default_cfg(); cfg.update(over)
        m = Main(stamps=stamps, stop=stop, cfg=cfg); e = m.build()
        nbytes = code_bytes(e.text())
        k0 = gen_k0(store_mod=cfg.get("k0mod", ""), warm_label="main_kernel" if cfg.get("warm", True) else None, warm_bytes=nbytes, dbg=cfg.get('hdbg'))
        ks = [dict(name="prep_kernel", body=k0.text(), grid=256, block=256, lds=32*RS, vgpr=176, accum=176),
              dict(name="main_kernel", body=e.text(), grid=256, block=256, lds=160*1024, vgpr=512, accum=256)]
        if cfg.get("empty"): ks.append(dict(name="empty_kernel", body="s_endpgm\n", grid=256, block=256, lds=0, vgpr=8, accum=8))
        if cfg.get("twice"): ks = ks + ks
        if cfg.get("emptyfirst"): ks = [dict(name="empty_kernel", body="s_endpgm\n", grid=256, block=256, lds=0, vgpr=8, accum=8)] * cfg["emptyfirst"] + ks
        if cfg.get("k0twice"): ks = [ks[0]] + ks
        txt = wrap(ks)
        open(path, "w").write(txt)
        print(path, e.stat, len(txt), "bytes")
        json.dump(m.stamp_names, open(path + ".stamps", "w"))
        return e
    make("vD.s", k0mod="sc1"); make("vI.s", k0mod="sc1", emptyfirst=1); make("vJ.s", k0mod="sc1", emptyfirst=3)
    e = make("full.s")
    make("full_st.s", stamps=True)
    make("fine_st.s", stamps=True, fine=True, stop="p2.0")
```
